```python
import torch

def _softmax(x, axis=-1):
    return torch.softmax(x, dim=axis)

def _gelu(x):
    return torch.nn.functional.gelu(x, approximate='tanh')

def _silu(x):
    return torch.nn.functional.silu(x)

def _sigmoid(x):
    return torch.sigmoid(x)

def _layernorm(x, axis=-1, eps=1e-05):
    m = x.mean(dim=axis, keepdim=True)
    v = x.var(dim=axis, keepdim=True, unbiased=False)
    return (x - m) / torch.sqrt(v + eps)

def _scatter_add(tgt, idx, src, axis=0):
    return tgt.clone().index_add_(axis, idx, src)

def _segment_sum(src, seg, n):
    out = torch.zeros((n,) + src.shape[1:], dtype=src.dtype)
    return out.index_add_(0, seg, src)

def _pad(x, pw):
    flat = tuple((v for pair in reversed(pw) for v in pair))
    return torch.nn.functional.pad(x, flat)
kernel_name = 'adaLN_cond__ssm_conv_s4__dense_activation_silu__prompt'

def setup_inputs():

    _w = lambda a: (lambda t: t.to(torch.bfloat16) if t.is_floating_point() else t)(torch.as_tensor(a))

    def _A_setup():
        B, L, D, N = (1, 2048, 448, 256)
        A_re = -(lambda _x: torch.exp(torch.as_tensor(_x)))((lambda *s: torch.randn(*s, dtype=torch.bfloat16) * 3.2)(D, N))
        A_im = torch.pi * (lambda *s: torch.randn(*s, dtype=torch.bfloat16) * 0.05)(D, N)
        B_re = (lambda *s: torch.randn(*s, dtype=torch.bfloat16) * 0.1)(D, N)
        B_im = (lambda *s: torch.randn(*s, dtype=torch.bfloat16) * 0.1)(D, N)
        C_re = (lambda *s: torch.randn(*s, dtype=torch.bfloat16) * 0.1)(D, N)
        C_im = (lambda *s: torch.randn(*s, dtype=torch.bfloat16) * 0.1)(D, N)
        log_dt = (lambda *s: torch.randn(*s, dtype=torch.bfloat16) * 0.05)(D) * 0.5 - 4.0
        Dskip = (lambda *s: torch.randn(*s, dtype=torch.bfloat16) * 0.05)(D)
        return {'u': _w((lambda *s: torch.randn(*s, dtype=torch.bfloat16) * 0.05)(B, L, D)), 'A_re': _w(A_re), 'A_im': _w(A_im), 'B_re': _w(B_re), 'B_im': _w(B_im), 'C_re': _w(C_re), 'C_im': _w(C_im), 'log_dt': _w(log_dt), 'Dskip': _w(Dskip)}
    _A_in = _A_setup()

    def _B_setup():
        B, S, D, F = (1, 2048, 448, 1792)
        return {'x': _w((lambda *s: torch.randn(*s, dtype=torch.bfloat16) * 0.05)(B, S, D)), 'w1': _w((lambda *s: torch.randn(*s, dtype=torch.bfloat16) * 3.2)(D, F) * D ** (-0.5)), 'w2': _w((lambda *s: torch.randn(*s, dtype=torch.bfloat16) * 0.4)(F, D) * F ** (-0.5))}
    _B_in = _B_setup()
    return {'A_u': _A_in['u'], 'A_A_re': _A_in['A_re'], 'A_A_im': _A_in['A_im'], 'A_B_re': _A_in['B_re'], 'A_B_im': _A_in['B_im'], 'A_C_re': _A_in['C_re'], 'A_C_im': _A_in['C_im'], 'A_log_dt': _A_in['log_dt'], 'A_Dskip': _A_in['Dskip'], 'B_x': _B_in['x'], 'B_w1': _B_in['w1'], 'B_w2': _B_in['w2'], 'c': _w((lambda *s: torch.randn(*s, dtype=torch.bfloat16) * 0.2)(1, 448) * 8.0), 'w_mod': _w((lambda *s: torch.randn(*s, dtype=torch.bfloat16) * 0.2)(448, 6 * 448) * 448 ** (-0.5) * 8.0)}

def reference(A_u, A_A_re, A_A_im, A_B_re, A_B_im, A_C_re, A_C_im, A_log_dt, A_Dskip, B_x, B_w1, B_w2, c, w_mod):

    def _A_ref(u, A_re, A_im, B_re, B_im, C_re, C_im, log_dt, Dskip):
        Bsz, L, D = u.shape
        dt = torch.exp(log_dt)[:, None]
        A = A_re + 1j * A_im
        Bc = B_re + 1j * B_im
        Cc = C_re + 1j * C_im
        logdA = dt * A
        dB = dt * Bc
        l = (lambda x, dt: x.to(dt))(torch.arange(L), A_re.dtype)
        P = torch.exp(logdA[:, :, None] * l[None, None, :])
        K = torch.einsum('dn,dnl,dn->dl', Cc, P, dB).real
        L2 = 2 * L
        Kp = _pad(K, ((0, 0), (0, L)))
        up = (lambda x, *d: x.permute(*d))(u, 0, 2, 1)
        up = _pad(up, ((0, 0), (0, 0), (0, L)))
        Kf = (lambda x, axes=(-2, -1): torch.fft.rfft2(x.float(), dim=axes))(Kp[:, None, :], axes=(-2, -1))
        Uf = (lambda x, axes=(-2, -1): torch.fft.rfft2(x.float(), dim=axes))(up[:, :, None, :], axes=(-2, -1))
        Yf = Uf * Kf[None, :, :, :]
        y = (lambda x, s, axes=(-2, -1): torch.fft.irfft2(x, s=s, dim=axes).to(torch.bfloat16))(Yf, (1, L2), axes=(-2, -1))[:, :, 0, :L]
        y = (lambda x, *d: x.permute(*d))(y, 0, 2, 1) + u * Dskip[None, None, :]
        return y

    def _B_ref(x, w1, w2):
        h = torch.einsum('bsd,df->bsf', x, w1)
        h = _silu(h)
        out = torch.einsum('bsf,fd->bsd', h, w2)
        return out
    x = A_u
    mod = (_silu(c) @ w_mod).reshape(c.shape[0], 6, 1, -1)
    sa, ca, ga, sb, cb, gb = (mod[:, 0].clone(), mod[:, 1].clone(), mod[:, 2].clone(), mod[:, 3].clone(), mod[:, 4].clone(), mod[:, 5].clone())
    h = _layernorm(x, axis=-1) * (1 + ca) + sa
    x = x + ga * _A_ref(h, A_A_re, A_A_im, A_B_re, A_B_im, A_C_re, A_C_im, A_log_dt, A_Dskip)
    h = _layernorm(x, axis=-1) * (1 + cb) + sb
    x = x + gb * _B_ref(h, B_w1, B_w2)
    return x
```

```python
import re

REG_RE = re.compile(r'(?<![\w.])([vas])(?:(\d+)|\[(\d+):(\d+)\])(?![\w])')
TRANS = ('v_exp_f32', 'v_log_f32', 'v_rcp_f32', 'v_rsq_f32', 'v_sqrt_f32', 'v_sin_f32', 'v_cos_f32')

def regs_of(tok):
    out = []
    for m in REG_RE.finditer(tok):
        k = m.group(1)
        if m.group(2) is not None: out.append((k, int(m.group(2))))
        else: out += [(k, i) for i in range(int(m.group(3)), int(m.group(4)) + 1)]
    if re.search(r'\bvcc\b', tok): out += [('s', 'vcc')]
    if re.search(r'\bm0\b', tok): out += [('s', 'm0')]
    return out

def split_ops(s):
    ops, depth, cur = [], 0, ''
    for ch in s:
        if ch in '[(': depth += 1
        if ch in '])': depth -= 1
        if ch == ',' and depth == 0: ops.append(cur.strip()); cur = ''
        else: cur += ch
    if cur.strip(): ops.append(cur.strip())
    return ops

class Ins:
    def __init__(self, text):
        self.text = text
        t = text.split(';')[0].strip()
        p = t.split(None, 1)
        self.op = p[0]
        rest = p[1] if len(p) > 1 else ''
        ops = split_ops(rest)
        self.ops = ops
        op = self.op
        self.is_mfma = op.startswith('v_mfma')
        self.is_valu = op.startswith('v_') and not self.is_mfma
        self.is_vmem = op.startswith(('buffer_', 'global_', 'flat_'))
        self.is_ds = op.startswith('ds_')
        self.is_salu = op.startswith('s_')
        self.is_trans = op.replace('_e32', '').replace('_e64', '') in TRANS
        self.is_dpp = ('_dpp' in op) or bool(re.search(r'\b(row_|quad_perm|wave_)', rest))
        self.is_perml = op.startswith('v_permlane')
        self.is_rdlane = op.startswith(('v_readlane', 'v_readfirstlane'))
        self.is_dot = op.startswith('v_dot')
        self.wr, self.rd = set(), set()
        self.states = 1
        first = lambda o: regs_of(o.split(' ')[0]) if not o.startswith(('abs', '-', '|')) else regs_of(o)
        allr = [regs_of(o) for o in ops]
        if op == 's_nop':
            self.states = int(ops[0], 0) + 1
        elif self.is_mfma:
            self.wr = set(allr[0]); self.A = set(allr[1]); self.B = set(allr[2]); self.C = set(allr[3]) if len(allr) > 3 else set()
            self.rd = self.A | self.B | self.C
            self.passes = 8 if '32x32' in op else 4
        elif self.is_valu:
            if self.is_perml and 'swap' in op:
                self.wr = set(allr[0] + allr[1]); self.rd = set(self.wr)
            elif op.startswith('v_cmp'):
                self.wr = set(allr[0]); self.rd = set(sum(allr[1:], []))
            elif re.match(r'v_(add|sub|subrev|addc|subb)_co', op) or op.startswith('v_mad_u64'):
                self.wr = set(allr[0] + allr[1]); self.rd = set(sum(allr[2:], []))
            else:
                self.wr = set(allr[0]); self.rd = set(sum(allr[1:], []))
                if op.startswith(('v_fmac', 'v_dot2c', 'v_writelane', 'v_pk_fmac')) or self.is_dpp or 'sdwa' in op: self.rd |= self.wr
        elif self.is_vmem:
            lds = bool(re.search(r'\blds\b', rest)) or 'load_lds' in op
            self.is_ldsdma = lds
            if 'store' in op or ('atomic' in op and not re.search(r'\bsc0\b', rest)) or lds or op in ('buffer_inv', 'buffer_wbl2'):
                self.rd = set(sum(allr, []))
                self.wide_store = set()
                if 'store' in op and ('x4' in op or 'x3' in op):
                    self.wide_store = set(allr[0]) if op.startswith('buffer') else set(allr[1])
                if lds: self.rd.add(('s', 'm0'))
            else:
                self.wr = set(allr[0]); self.rd = set(sum(allr[1:], [])); self.wide_store = set()
        elif self.is_ds:
            if op.startswith(('ds_write', 'ds_add_f32', 'ds_add_u32')):
                self.rd = set(sum(allr, []))
            else:
                self.wr = set(allr[0]); self.rd = set(sum(allr[1:], []))
                if 'd16' in op: self.rd |= self.wr
        elif self.is_salu:
            if op.startswith(('s_cmp', 's_cbranch', 's_branch', 's_waitcnt', 's_barrier', 's_endpgm', 's_sleep', 's_setprio', 's_bitcmp')):
                self.rd = set(sum(allr, []))
            elif allr:
                self.wr = set(allr[0]); self.rd = set(sum(allr[1:], []))

def need(p, c):
    n = 0
    vw = {r for r in p.wr if r[0] in 'va'}
    sw = {r for r in p.wr if r[0] == 's'}
    if p.is_valu:
        if c.is_mfma and vw & c.rd: n = max(n, 2)
        if p.is_trans and c.is_valu and not c.is_trans and vw & c.rd: n = max(n, 1)
        if p.is_trans and (c.is_vmem or c.is_ds) and vw & c.rd: n = max(n, 1)
        if c.is_valu and (c.is_dpp or c.is_perml) and vw & c.rd: n = max(n, 2)
        if c.is_rdlane and vw & c.rd: n = max(n, 1)
        if sw:
            if c.is_valu and sw & c.rd: n = max(n, 4 if c.is_rdlane or c.op.startswith('v_writelane') else 2)
            if c.is_vmem and sw & c.rd: n = max(n, 5)
            if c.is_salu and sw & c.rd: n = max(n, 1)
        if p.is_dot and (c.is_valu or c.is_vmem or c.is_ds) and vw & (c.rd | c.wr):
            same_c = c.op == p.op and not (vw & set(regs_of(c.ops[1]) + regs_of(c.ops[2])))
            if not same_c: n = max(n, 3)
        if ('sdwa' in p.op and 'dst_sel:DWORD' not in p.text) and c.is_valu and vw & (c.rd | c.wr): n = max(n, 1)
    if p.is_mfma:
        big = p.passes == 8
        if c.is_mfma:
            if p.wr & (c.A | c.B): n = max(n, 12 if big else 8)
            if p.wr & c.C and not (p.wr == c.C and p.passes == c.passes): n = max(n, 10 if big else 6)
            if p.wr & c.wr and not (p.wr & c.C): n = max(n, 12 if big else 8)
        elif c.is_valu or c.is_vmem or c.is_ds:
            if p.wr & (c.rd | c.wr): n = max(n, 12 if big else 8)
            if c.is_valu and p.C & c.wr: n = max(n, 7 if big else 3)
    if p.is_vmem and getattr(p, 'wide_store', None):
        if p.wide_store & c.wr: n = max(n, 2)
    if p.is_ds and p.op in ('ds_write_b128', 'ds_write_b96') and c.is_valu:
        if set(regs_of(p.ops[1])) & c.wr: n = max(n, 2)
    if p.is_salu and ('s', 'm0') in p.wr and c.is_vmem and getattr(c, 'is_ldsdma', False): n = max(n, 1)
    return n

class Asm:
    def __init__(self):
        self.out = []
        self.hist = []
        self.vm_list = []
        self.ds_list = []
        self.nops = 0
    def raw(self, s):
        self.out.append(s)
    def label(self, l):
        self.out.append(l + ':')
    def __call__(self, s):
        for line in s.split('\n'):
            line = line.strip()
            if not line or line.startswith(';'):
                continue
            if line.endswith(':'):
                self.label(line[:-1]); continue
            ins = Ins(line)
            dist = 0; req = 0
            for p in reversed(self.hist):
                r = need(p, ins) - dist
                if r > req: req = r
                dist += p.states
                if dist >= 20: break
            while req > 0:
                k = min(req, 16)
                self.out.append(f'    s_nop {k-1}')
                self.hist.append(Ins(f's_nop {k-1}')); self.nops += 1
                req -= k
            self.out.append('    ' + line)
            self.hist.append(ins)
            self.hist = self.hist[-24:]
    def vm(self, s, tag=None):
        self(s); self.vm_list.append(tag)
    def ds(self, s, tag=None):
        self(s); self.ds_list.append(tag)
    def _after(self, lst, tags):
        if not isinstance(tags, (list, tuple, set)): tags = [tags]
        idx = [i for i, t in enumerate(lst) if t in tags]
        if not idx: return None
        return len(lst) - 1 - max(idx)
    def wait(self, vm=None, ds=None):
        parts = []
        if vm is not None:
            n = 0 if vm == 'all' else self._after(self.vm_list, vm)
            if n is not None:
                if n <= 62: parts.append(f'vmcnt({n})')
                self.vm_list = self.vm_list[len(self.vm_list) - n:] if n > 0 else []
        if ds is not None:
            n = 0 if ds == 'all' else self._after(self.ds_list, ds)
            if n is not None:
                n = min(n, 15)
                parts.append(f'lgkmcnt({n})')
                self.ds_list = self.ds_list[len(self.ds_list) - n:] if n > 0 else []
        if parts: self('s_waitcnt ' + ' '.join(parts))
    def reset_counters(self):
        self.vm_list = []; self.ds_list = []
    def text(self):
        return '\n'.join(self.out) + '\n'

def kernel_header(name):
    return f'.globl {name}\n.p2align 8\n.type {name},@function\n{name}:\n'

def kernel_desc(name, vgpr, sgpr, accum):
    return f'''.p2align 6
.amdhsa_kernel {name}
  .amdhsa_next_free_vgpr {vgpr}
  .amdhsa_next_free_sgpr {sgpr}
  .amdhsa_accum_offset {accum}
  .amdhsa_group_segment_fixed_size 0
  .amdhsa_kernarg_size 136
  .amdhsa_user_sgpr_count 2
  .amdhsa_user_sgpr_kernarg_segment_ptr 1
  .amdhsa_system_sgpr_workgroup_id_x 1
.end_amdhsa_kernel
'''
```

```python
from asmlib import *
from layout import *
from k_prep import stamp_store
import struct
f2u = lambda f: struct.unpack('<I', struct.pack('<f', f))[0]

GRID = 224
PITCH = 1056
XY_SZ = 53 * PITCH
KD0 = 2 * XY_SZ
KD_SZ = 1536
KR0 = KD0 + 2 * KD_SZ
KR_B = 4160
KR_SZ = 8320
U0 = KR0 + 2 * KR_SZ
U_SZ = 4576
X0 = U0 + 2 * U_SZ
X_SZ = 4096
LDS = X0 + 2 * X_SZ
RED = 0

def gen_conv(ts=False, dbgK=False):
    a = Asm()
    a.raw(kernel_header('conv_kernel'))
    st = (lambda i: a(f's_memrealtime s[{80+2*i}:{81+2*i}]')) if ts else (lambda i: None)
    st(0)
    a(f'''s_cmp_ge_u32 s2, {GRID}
    s_cbranch_scc1 C_end
    s_load_dwordx2 s[8:9], s[0:1], {KA['ws']}
    s_load_dwordx4 s[12:15], s[0:1], {KA['Are']}
    s_load_dwordx4 s[16:19], s[0:1], {KA['Bre']}
    s_load_dwordx4 s[20:23], s[0:1], {KA['Cre']}
    s_load_dwordx4 s[24:27], s[0:1], {KA['logdt']}
    v_lshrrev_b32 v1, 6, v0
    s_lshl_b32 s3, s2, 10
    v_readfirstlane_b32 s4, v1            ; wave
    v_lshl_add_u32 v2, v0, 1, s3
    s_lshl_b32 s5, s2, 13
    v_lshl_add_u32 v3, v0, 4, s5
    v_lshrrev_b32 v4, 2, v0
    v_and_b32 v5, 1, v0
    v_lshl_add_u32 v4, v4, 1, v5
    v_lshlrev_b32 v5, 5, v4
    v_add_u32 v5, {ST}, v5
    s_lshl_b32 s6, s2, 2
    s_lshl_b32 s7, s2, 3
    s_waitcnt lgkmcnt(0)''')
    for i, b in enumerate((12, 14, 16, 18, 20, 22)):
        a.vm(f'global_load_ushort v{10+i}, v2, s[{b}:{b+1}]', 'par')
    a(f'''s_load_dword s28, s[24:25], s6
    s_load_dword s29, s[26:27], s6
    s_add_u32 s30, s8, {MOD}
    s_addc_u32 s31, s9, 0
    s_add_u32 s30, s30, s7
    s_addc_u32 s31, s31, 0
    s_load_dwordx2 s[32:33], s[30:31], 0
    s_load_dwordx2 s[34:35], s[30:31], {448*4}
    s_load_dwordx2 s[36:37], s[30:31], {896*4}''')
    a.vm('global_load_dwordx4 v[16:19], v3, s[8:9]', 'xt')
    a.vm('global_load_dwordx4 v[20:23], v5, s[8:9]', 'st')
    a.vm('global_load_dwordx4 v[24:27], v5, s[8:9] offset:16', 'st')
    a(f'''s_lshr_b32 s38, s4, 2
    v_and_b32 v6, 255, v0                 ; n / c
    s_mul_i32 s39, s38, {XY_SZ}
    v_lshl_add_u32 v7, v6, 2, s39
    v_mov_b32 v8, 0
    v_mov_b32 v9, 0
    v_cmp_gt_u32 vcc, 60, v6
    s_and_saveexec_b64 s[40:41], vcc
    s_mul_i32 s42, s38, {U_SZ}
    s_add_u32 s42, s42, {U0}
    v_lshl_add_u32 v28, v6, 3, s42
    ds_write_b64 v28, v[8:9]
    v_cmp_gt_u32 vcc, 4, v6
    s_and_b64 exec, exec, vcc
    s_mul_i32 s42, s38, {KR_SZ}
    s_add_u32 s42, s42, {KR0 + 4096}
    v_lshl_add_u32 v28, v6, 3, s42
    ds_write_b64 v28, v[8:9]
    ds_write_b64 v28, v[8:9] offset:{KR_B}
    s_mul_i32 s42, s38, {KD_SZ}
    s_add_u32 s42, s42, {KD0}
    v_mov_b32 v28, s42
    ds_write_b16 v28, v8 offset:{641*2}
    s_mov_b64 exec, s[40:41]
    v_lshlrev_b32 v28, 3, v6
    v_sub_u32 v28, 2047, v28''')
    for e in range(9):
        a(f'v_subrev_u32 v{30+e}, {e}, v28')
    for e in range(9):
        a(f'v_cvt_f32_i32 v{44+e}, v{30+e}')
    for e in range(9):
        a(f'v_cvt_pk_bf16_f32 v{44+e}, v{44+e}, 0')
    for e in range(9):
        a(f'v_subrev_u32 v{44+e}, 17024, v{44+e}')
        a(f'v_cmp_gt_i32 vcc, 128, v{30+e}')
        a(f'v_cndmask_b32 v{30+e}, v{44+e}, v{30+e}, vcc')
    a(f'''v_mov_b32 v44, 641
    v_cmp_gt_i32 vcc, 0, v38
    v_cndmask_b32 v38, v38, v44, vcc''')
    for e in range(9):
        a(f'v_lshl_add_u32 v{30+e}, v{30+e}, 1, s42')
    a(f'''v_and_b32 v44, 15, v0
    s_and_b32 s43, s4, 1
    s_lshl_b32 s43, s43, 4
    v_add_u32 v44, s43, v44               ; j
    v_bfe_u32 v45, v0, 4, 2               ; kg
    s_bitcmp1_b32 s4, 1
    s_cbranch_scc1 C_kd_xt1
    v_lshlrev_b32 v46, 3, v44
    v_lshl_add_u32 v46, v45, 2, v46
    v_lshlrev_b32 v47, 2, v44
    v_add_u32 v47, 256, v47               ; kg==2
    v_lshlrev_b32 v48, 1, v44
    v_add_u32 v48, 384, v48               ; kg==3
    v_cmp_eq_u32 vcc, 2, v45
    v_cndmask_b32 v46, v46, v47, vcc
    v_cmp_eq_u32 vcc, 3, v45
    v_cndmask_b32 v40, v46, v48, vcc
    v_add_u32 v41, 1, v40
    v_add_u32 v46, 2, v40
    v_add_u32 v47, 64, v40
    v_cndmask_b32 v42, v46, v47, vcc
    v_add_u32 v43, 1, v42
    s_branch C_kd_done
    C_kd_xt1:
    v_add_u32 v46, 512, v44
    v_mov_b32 v47, 700                    ; dump
    v_mov_b32 v48, 640
    v_lshl_add_u32 v49, v45, 5, v44
    v_cmp_eq_u32 vcc, 32, v49
    v_cndmask_b32 v48, v47, v48, vcc
    v_cmp_eq_u32 vcc, 0, v45
    v_cndmask_b32 v40, v48, v46, vcc
    v_add_u32 v46, 32, v46
    v_cndmask_b32 v41, v47, v46, vcc
    v_add_u32 v46, 32, v46
    v_cndmask_b32 v42, v47, v46, vcc
    v_add_u32 v46, 32, v46
    v_cndmask_b32 v43, v47, v46, vcc
    C_kd_done:''')
    for r in range(4): a(f'v_lshl_add_u32 v{40+r}, v{40+r}, 1, s42')
    a(f'''v_and_b32 v44, 15, v0
    v_mul_u32_u24 v44, {PITCH}, v44
    v_lshl_add_u32 v44, v45, 4, v44
    s_bfe_u32 s44, s4, 0x10001            ; xt
    s_mul_i32 s44, s44, {16*PITCH}
    s_add_u32 s44, s44, s39
    s_and_b32 s45, s4, 1
    s_mul_i32 s45, s45, {16*PITCH}
    s_add_u32 s45, s45, s39
    s_add_u32 s45, s45, {21*PITCH}
    v_add_u32 v45, s45, v44               ; B (Y) addr
    v_add_u32 v44, s44, v44               ; A (X) addr
    s_waitcnt lgkmcnt(0)
    s_cmp_eq_u32 s38, 0
    s_cselect_b32 s46, 16, 0
    s_lshl_b32 s28, s28, s46
    s_and_b32 s28, s28, 0xffff0000
    v_mov_b32 v46, {LOG2E}
    v_mul_f32 v47, s28, v46
    v_exp_f32 v47, v47
    v_mov_b32 v48, {f2u(0.15915494309189535)}
    v_cvt_pk_bf16_f32 v47, 0, v47         ; dt''')
    a.reset_counters(); a.vm_list = ['par'] * 6 + ['xt', 'st', 'st']
    a.wait(vm='par')
    st(1)
    for i in range(6): a(f'v_lshlrev_b32 v{10+i}, 16, v{10+i}')
    a('''v_mul_f32 v10, v47, v10
    v_mul_f32 v11, v47, v11
    v_mul_f32 v12, v47, v12
    v_mul_f32 v13, v47, v13
    v_mul_f32 v10, v46, v10               ; lr
    v_mul_f32 v11, v48, v11               ; th
    v_mul_f32 v50, v14, v12
    v_mul_f32 v51, v14, v13
    v_fma_f32 v50, -v15, v13, v50
    v_fmac_f32 v51, v15, v12''')
    a(f'''v_mul_f32 v64, 0x41000000, v10
    v_mul_f32 v65, 0x43800000, v10
    v_mul_f32 v66, 0x41000000, v11
    v_mul_f32 v67, 0x43800000, v11
    v_exp_f32 v10, v10
    v_exp_f32 v64, v64
    v_exp_f32 v65, v65
    v_fract_f32 v11, v11
    v_fract_f32 v66, v66
    v_fract_f32 v67, v67
    v_cos_f32 v52, v11
    v_sin_f32 v53, v11
    v_cos_f32 v56, v66
    v_sin_f32 v59, v66
    v_cos_f32 v60, v67
    v_sin_f32 v61, v67
    v_mul_f32 v52, v10, v52
    v_mul_f32 v53, v10, v53
    v_mul_f32 v56, v64, v56
    v_mul_f32 v59, v64, v59
    v_mul_f32 v60, v65, v60
    v_mul_f32 v61, v65, v61
    v_sub_f32 v55, 0, v53
    v_sub_f32 v57, 0, v59
    v_sub_f32 v63, 0, v61''')
    tmp = [0]
    def emit(row, r):
        t = 100 + (tmp[0] % 8); tmp[0] += 1
        a(f'v_cvt_pk_bf16_f32 v{t}, v{r}, v{r+1}')
        a.ds(f'ds_write_b32 v7, v{t} offset:{row*PITCH}')
    def cmul_ops(d, x, m):
        return [f'v_mul_f32 v{d}, v{x}, v{m}', f'v_mul_f32 v{d+1}, v{x}, v{m+1}',
                f'v_fmac_f32 v{d}, v{x+1}, v{m+3}', f'v_fmac_f32 v{d+1}, v{x+1}, v{m}']
    def inter(*lists):
        n = max(len(l) for l in lists)
        for i in range(n):
            for l in lists:
                if i < len(l): a(l[i])
    inter(cmul_ops(68, 56, 56))
    a('v_sub_f32 v71, 0, v69\nv_mov_b32 v98, 0x3f80')
    a.ds(f'ds_write_b32 v7, v98 offset:{21*PITCH}')
    emit(0, 50); emit(21 + 1, 56); emit(21 + 2, 68)
    xreg = {0: 50, 1: 72, 2: 74, 3: 76, 4: 78, 5: 80, 6: 82, 7: 84}
    jobsC = []
    for i in range(1, 8): jobsC.append((xreg[i], xreg[i-1], 52, i))
    pp = [86, 88]
    prev = 50
    for k, row in enumerate((8, 12, 14, 16, 17, 18, 19, 20)):
        d = pp[k % 2]; jobsC.append((d, prev, 60, row)); prev = d
    prev = 78
    for k, row in enumerate((10, 13, 15)):
        d = [72, 76][k % 2]; jobsC.append((d, prev, 60, row)); prev = d
    jobsC.append((80, 74, 60, 9)); jobsC.append((84, 82, 60, 11))
    ya, yb = 56, 68
    ra, rb_ = [90, 92], [94, 96]
    step = 0
    jc = 0
    j = 3
    while j <= 31 or jc < len(jobsC):
        ls = []; em = []
        if j <= 31:
            d = ra[step % 2]; ls.append(cmul_ops(d, ya, 68)); ya = d; em.append((21 + j, d))
            if j + 1 <= 31:
                d = rb_[step % 2]; ls.append(cmul_ops(d, yb, 68)); yb = d; em.append((21 + j + 1, d))
            j += 2
        n_c = 1 if j <= 25 else 2
        for _ in range(n_c if j <= 33 else 2):
            if jc < len(jobsC):
                d, x, m, row = jobsC[jc]
                if any(d2 == x for _, d2 in em): break
                ls.append(cmul_ops(d, x, m)); em.append((row, d)); jc += 1
        inter(*ls)
        for row, d in em: emit(row, d)
        step += 1
    a.wait(ds='all')
    st(2)
    a('s_barrier')
    for s in range(16):
        a.ds(f'ds_read_b128 v[{64+8*s}:{67+8*s}], v44 offset:{64*s}', f'ka{s}')
        a.ds(f'ds_read_b128 v[{68+8*s}:{71+8*s}], v45 offset:{64*s}', f'kb{s}')
        if s == 6:
            pass
    a(f'''v_mov_b32 v46, s32
    v_mov_b32 v47, s33
    v_mov_b32 v48, s34
    v_mov_b32 v49, s35
    v_and_b32 v50, 2, v0
    v_cmp_eq_u32 vcc, 0, v50
    v_lshlrev_b32 v51, 4, v4              ; t0*2 bytes
    v_cndmask_b32 v46, v47, v46, vcc      ; sa
    v_cndmask_b32 v48, v49, v48, vcc      ; ca
    v_mul_u32_u24 v52, {U_SZ // 2}, v50
    v_add3_u32 v52, v52, v51, 0
    v_lshl_add_u32 v53, v50, 11, v51
    v_add_f32 v48, 1.0, v48
    v_add_u32 v52, {U0 + 480}, v52
    v_add_u32 v53, {X0}, v53
    v_cvt_pk_bf16_f32 v48, 0, v48''')
    a.wait(vm='st')
    for i in range(8):
        a(f'v_and_b32 v{54+i}, 0xffff0000, v{20+i}')
        a(f'v_lshlrev_b32 v{20+i}, 16, v{20+i}')
    for i in range(8): a(f'v_rcp_f32 v{54+i}, v{54+i}')
    for i in range(4):
        a(f'v_lshlrev_b32 v{10+2*(i%2)}, 16, v{16+i}')
        a(f'v_and_b32 v{11+2*(i%2)}, 0xffff0000, v{16+i}')
        a(f'v_sub_f32 v{20+2*i}, v{10+2*(i%2)}, v{20+2*i}')
        a(f'v_sub_f32 v{21+2*i}, v{11+2*(i%2)}, v{21+2*i}')
    for i in range(8): a(f'v_mul_f32 v{20+i}, v{20+i}, v{54+i}')
    for i in range(8): a(f'v_fma_f32 v{20+i}, v{20+i}, v48, v46')
    for i in range(4): a(f'v_cvt_pk_bf16_f32 v{54+i}, v{20+2*i}, v{21+2*i}')
    for s in range(16):
        a.wait(ds=f'kb{s}')
        a(f'v_mfma_f32_16x16x32_bf16 v[12:15], v[{64+8*s}:{67+8*s}], v[{68+8*s}:{71+8*s}], ' + ('0' if s == 0 else 'v[12:15]'))
    a.ds('ds_write_b128 v52, v[54:57]')
    a.ds('ds_write_b128 v53, v[16:19]')
    a('v_cvt_pk_bf16_f32 v12, v12, v13\nv_cvt_pk_bf16_f32 v14, v14, v15')
    a.ds('ds_write_b16 v40, v12'); a.ds('ds_write_b16_d16_hi v41, v12')
    a.ds('ds_write_b16 v42, v14'); a.ds('ds_write_b16_d16_hi v43, v14')
    a.wait(ds='all')
    a('s_barrier')
    st(3)
    for e in range(9):
        a.ds(f'ds_read_u16 v{50+e}, v{30+e}')
    a(f'''s_mul_i32 s42, s38, {KR_SZ}
    s_add_u32 s42, s42, {KR0}
    v_lshl_add_u32 v28, v6, 4, s42''')
    a(f'''s_bfe_u32 s47, s4, 0x10001
    s_and_b32 s48, s4, 1                  ; half
    v_and_b32 v30, 15, v0                 ; i / j
    v_bfe_u32 v31, v0, 4, 2               ; kg
    s_mul_i32 s49, s47, {U_SZ}
    s_lshl_b32 s50, s48, 8
    s_add_u32 s49, s49, s50
    s_add_u32 s49, s49, {U0}
    v_lshlrev_b32 v32, 5, v30
    v_lshl_add_u32 v32, v31, 4, v32
    v_add_u32 v32, s49, v32               ; F addr
    v_lshlrev_b32 v33, 3, v31
    v_sub_u32 v33, v33, v30
    v_add_u32 v33, 1807, v33
    v_and_b32 v34, 1, v33                 ; 1 -> copy B
    v_and_b32 v33, -2, v33
    v_lshlrev_b32 v33, 1, v33
    v_mul_u32_u24 v34, {KR_B}, v34
    s_mul_i32 s49, s47, {KR_SZ}
    s_add_u32 s49, s49, s50
    s_add_u32 s49, s49, {KR0 - 512}
    v_add3_u32 v33, v33, v34, s49
    v_subrev_u32 v34, 1024, v33
    v_subrev_u32 v35, 2048, v33
    v_subrev_u32 v36, 3072, v33''')
    a.wait(ds='all')
    for q in range(4): a(f'v_lshl_or_b32 v{20+q}, v{51+2*q}, 16, v{50+2*q}')
    for q in range(4): a(f'v_lshl_or_b32 v{40+q}, v{52+2*q}, 16, v{51+2*q}')
    a.ds('ds_write_b128 v28, v[20:23]')
    a.ds(f'ds_write_b128 v28, v[40:43] offset:{KR_B}')
    if dbgK:
        a(f'v_add_u32 v3, 0x2000000, v3\nglobal_store_dwordx4 v3, v[20:23], s[8:9]')
    a.wait(ds='all')
    a('s_barrier')
    st(4)
    a('s_cmp_ge_u32 s4, 4\ns_cbranch_scc1 C_helper')
    F = lambda b, m: 64 + 64 * b + 4 * m
    A = lambda b, n: 96 + 64 * b + 4 * n
    ACC = lambda c: 192 + 4 * c
    def reads(s):
        b = s & 1; L = []
        for q in range(8):
            L.append((f'ds_read_b128 v[{F(b,q)}:{F(b,q)+3}], v32 offset:{64*s + 512*q}', f'F{s}_{q}'))
            o = (64 * s + (512 if q % 2 == 0 else 0)) // 4
            L.append((f'ds_read2_b32 v[{A(b,q)}:{A(b,q)+1}], v{33 + q//2} offset0:{o} offset1:{o+1}', f'A{s}_{q}'))
            L.append((f'ds_read2_b32 v[{A(b,q)+2}:{A(b,q)+3}], v{33 + q//2} offset0:{o+2} offset1:{o+3}', f'A{s}_{q}'))
        return L
    for t, g in reads(0): a.ds(t, g)
    for s in range(4):
        b = s & 1
        nxt = reads(s + 1) if s < 3 else []
        pairs = sorted([(n, m) for n in range(8) for m in range(8 - n)], key=lambda p: (max(p), p))
        seen = set()
        for k, (n, m) in enumerate(pairs):
            a.wait(ds=[f'A{s}_{n}', f'F{s}_{m}'])
            c = n + m
            first = (s == 0 and c not in seen); seen.add(c)
            a(f'v_mfma_f32_16x16x32_bf16 v[{ACC(c)}:{ACC(c)+3}], v[{A(b,n)}:{A(b,n)+3}], v[{F(b,m)}:{F(b,m)+3}], ' + ('0' if first else f'v[{ACC(c)}:{ACC(c)+3}]'))
            if k >= 6 and nxt:
                t, g = nxt.pop(0); a.ds(t, g)
        assert not nxt
    st(5)
    a(f'''v_and_b32 v37, 63, v0
    v_lshlrev_b32 v37, 4, v37
    s_lshl_b32 s49, s4, 12
    v_add_u32 v38, s49, v37
    s_xor_b32 s49, s49, 4096
    v_add_u32 v37, s49, v37
    v_lshlrev_b32 v39, 5, v30
    v_lshl_add_u32 v39, v31, 3, v39
    s_lshl_b32 s50, s48, 11
    v_add_u32 v39, s50, v39               ; t0*2
    s_mul_i32 s51, s47, {U_SZ}
    s_add_u32 s51, s51, {U0 + 480}
    v_add_u32 v40, s51, v39
    s_lshl_b32 s51, s47, 12
    s_add_u32 s52, s51, {X0}
    v_add_u32 v41, s52, v39
    s_lshl_b32 s52, s2, 13
    s_add_u32 s51, s51, s52
    s_add_u32 s51, s51, {X2T}
    v_add_u32 v42, s51, v39
    s_cmp_eq_u32 s47, 0
    s_cselect_b32 s46, 16, 0
    s_cselect_b32 s36, s36, s37           ; ga
    s_lshl_b32 s29, s29, s46
    s_and_b32 s29, s29, 0xffff0000        ; Dskip
    s_cmp_eq_u32 s48, 0
    s_cbranch_scc1 C_h0''')
    for q in range(4): a(f'ds_write_b128 v38, v[{ACC(q)}:{ACC(q)+3}] offset:{1024*q}')
    for q in range(16): a(f'v_mov_b32 v{ACC(0)+q}, v{ACC(4)+q}')
    a('s_branch C_h1\nC_h0:')
    for q in range(4): a(f'ds_write_b128 v38, v[{ACC(4+q)}:{ACC(4+q)+3}] offset:{1024*q}')
    a.label('C_h1')
    for q in range(4):
        a(f'ds_read_b64 v[{64+2*q}:{65+2*q}], v40 offset:{512*q}')
        a(f'ds_read_b64 v[{72+2*q}:{73+2*q}], v41 offset:{512*q}')
    a('s_waitcnt lgkmcnt(0)\ns_barrier')
    a.reset_counters()
    for q in range(4): a.ds(f'ds_read_b128 v[{80+4*q}:{83+4*q}], v37 offset:{1024*q}', f'p{q}')
    for q in range(4):
        for k in range(2):
            a(f'v_lshlrev_b32 v{100+2*k}, 16, v{64+2*q+k}')
            a(f'v_and_b32 v{101+2*k}, 0xffff0000, v{64+2*q+k}')
            a(f'v_lshlrev_b32 v{104+2*k}, 16, v{72+2*q+k}')
            a(f'v_and_b32 v{105+2*k}, 0xffff0000, v{72+2*q+k}')
        a.wait(ds=f'p{q}')
        for r in range(4): a(f'v_add_f32 v{ACC(q)+r}, v{ACC(q)+r}, v{80+4*q+r}')
        for r in range(4): a(f'v_fmac_f32 v{ACC(q)+r}, s29, v{100+r}')
        for r in range(4): a(f'v_fmac_f32 v{104+r}, s36, v{ACC(q)+r}')
        a(f'v_cvt_pk_bf16_f32 v{108+2*q}, v104, v105\nv_cvt_pk_bf16_f32 v{109+2*q}, v106, v107')
        a(f'global_store_dwordx2 v42, v[{108+2*q}:{109+2*q}], s[8:9] offset:{512*q}')
    st(6)
    if ts: stamp_store(a, 1, 7, 'C_ts0')
    a('s_endpgm')
    a.label('C_helper')
    a('s_barrier')
    a.label('C_end')
    a('s_endpgm')
    return a.text(), kernel_desc('conv_kernel', 224, 102 if ts else 64, 224)
```

```python
from asmlib import *
from layout import *
from k_prep import stamp_store
import struct
f2u = lambda f: struct.unpack('<I', struct.pack('<f', f))[0]

GRID = 224
H2 = 0
X2S = 57344
STATP = 65536
RS = 67584
LDS = 69632

def gen_mlp(ts=False):
    a = Asm()
    a.raw(kernel_header('mlp_kernel'))
    st = (lambda i: a(f's_memrealtime s[{80+2*i}:{81+2*i}]')) if ts else (lambda i: None)
    st(0)
    a(f'''s_cmp_ge_u32 s2, {GRID}
    s_cbranch_scc1 M_end
    s_load_dwordx2 s[8:9], s[0:1], {KA['ws']}
    s_load_dwordx2 s[10:11], s[0:1], {KA['out']}
    s_lshr_b32 s3, s2, 3
    s_mul_hi_u32 s4, s3, 0x24924925       ; idx/7
    s_mul_i32 s5, s4, 7
    s_sub_u32 s5, s3, s5                  ; p
    s_and_b32 s3, s2, 7
    s_lshl_b32 s3, s3, 2
    s_add_u32 s4, s4, s3                  ; g
    v_lshrrev_b32 v4, 6, v0
    v_and_b32 v1, 63, v0
    v_readfirstlane_b32 s6, v4            ; wave
    v_lshlrev_b32 v1, 4, v1               ; lane*16
    v_lshrrev_b32 v5, 3, v0               ; dr
    v_and_b32 v6, 7, v0                   ; oct
    v_lshlrev_b32 v7, 12, v5
    v_lshl_add_u32 v7, v6, 4, v7
    v_mul_u32_u24 v8, 112, v5
    v_add_u32 v8, {CS}, v8
    s_lshl_b32 s7, s4, 7                  ; g*128 bytes
    s_add_u32 s7, s7, {X2T}
    s_mov_b32 s14, 0x10000000
    s_mov_b32 s15, 0x20000
    s_lshl_b32 s16, s5, 18                ; p*64*4096
    s_add_u32 s16, s16, s7
    s_lshl_b32 s17, s5, 2
    s_add_u32 s17, s17, s6
    s_mul_i32 s17, s17, {28*2048}
    s_add_u32 s18, s17, {W1F}
    s_add_u32 s19, s17, {W2F}             ; W2 base
    s_waitcnt lgkmcnt(0)
    s_mov_b32 s12, s8
    s_mov_b32 s13, s9''')
    for i in range(14):
        a.vm(f'buffer_load_dwordx4 v[{64+4*i}:{67+4*i}], v7, s[12:15], s7 offen', f'x{i}')
        a(f's_add_u32 s7, s7, {32*4096}')
    for i in range(7):
        a.vm(f'global_load_dwordx4 v[{32+4*i}:{35+4*i}], v8, s[8:9] offset:{16*i}', 'cs')
    a.vm('buffer_load_dwordx4 v[120:123], v7, s[12:15], s16 offen', 'sl')
    a(f's_add_u32 s16, s16, {32*4096}')
    a.vm('buffer_load_dwordx4 v[124:127], v7, s[12:15], s16 offen', 'sl')
    a(f'''s_lshr_b32 s20, s6, 1
    s_lshl_b32 s20, s20, 10
    v_add_u32 v12, s20, v1
    v_xor_b32 v13, 1024, v12
    s_and_b32 s21, s6, 1
    s_lshl_b32 s21, s21, 10
    v_add_u32 v14, s21, v1
    v_xor_b32 v15, 1024, v14''')
    a(f'''s_mul_i32 s22, s4, 28
    s_add_u32 s22, s22, s6
    s_lshl_b32 s22, s22, 13
    s_add_u32 s22, s22, {HF}''')
    for q in range(7):
        a(f'''s_add_u32 s23, s5, {q}
        s_sub_u32 s24, s23, 7
        s_cmp_ge_u32 s23, 7
        s_cselect_b32 s23, s24, s23
        s_lshl_b32 s24, s23, 13
        s_add_u32 s{40+q}, s19, s24
        s_lshl_b32 s24, s23, 15
        s_add_u32 s{50+q}, s22, s24''')
    W1 = lambda ks, ft: f'a[{8*ks+4*ft}:{8*ks+4*ft+3}]'
    def W2(q, k2, dt):
        o = 8 * k2 + 4 * dt
        if q == 0: return f'a[{224+o}:{227+o}]'
        if q <= 4: return f'v[{128+32*(q-1)+o}:{131+32*(q-1)+o}]'
        return f'a[{32*(q-5)+o}:{32*(q-5)+o+3}]'
    def HB(q, k2, tt):
        o = 8 * k2 + 4 * tt
        if q == 0: return f'v[{32+o}:{35+o}]'
        if q <= 5: return f'a[{64+32*(q-1)+o}:{67+32*(q-1)+o}]'
        return f'v[{32+o}:{35+o}]'
    bgq = []
    for ks in range(28):
        for ft in range(2):
            j = 2 * ks + ft
            pre = f's_add_u32 s18, s18, 4096' if (j % 4 == 0 and j > 0) else None
            bgq.append((pre, f'buffer_load_dwordx4 {W1(ks,ft)}, v1, s[12:15], s18 offen offset:{(j%4)*1024}', f'w1_{ks}', 0))
    for q in range(7):
        for k2 in range(4):
            for dt in range(2):
                pre = f's_add_u32 s{40+q}, s{40+q}, 4096' if (k2 == 2 and dt == 0) else None
                gate = 0 if q == 0 else (1 if q <= 4 else 2)
                bgq.append((pre, f'buffer_load_dwordx4 {W2(q,k2,dt)}, v{12+dt}, s[12:15], s{40+q} offen offset:{(k2%2)*2048}', f'w2_{q}', gate))
    gate_lvl = [0]
    def bg(n=1):
        for _ in range(n):
            if bgq and bgq[0][3] <= gate_lvl[0]:
                pre, t, tag, _g = bgq.pop(0)
                if pre: a(pre)
                a.vm(t, tag)
    bg(8)
    a(f'''v_lshlrev_b32 v9, 4, v0
    v_bfe_u32 v10, v0, 4, 1
    v_lshlrev_b32 v10, 6, v10
    v_xor_b32 v9, v9, v10
    v_bfe_u32 v10, v0, 5, 1               ; h
    v_bfe_u32 v11, v0, 2, 2               ; r4
    v_lshl_add_u32 v2, v10, 3, v11
    v_lshlrev_b32 v2, 7, v2
    v_bfe_u32 v60, v0, 4, 1
    v_lshl_add_u32 v2, v60, 5, v2
    v_and_b32 v60, 3, v0
    v_lshl_add_u32 v2, v60, 3, v2
    v_bfe_u32 v60, v0, 3, 1
    v_lshlrev_b32 v60, 6, v60
    v_xor_b32 v2, v2, v60
    s_lshr_b32 s21, s21, 4                ; (w&1)*64
    v_xor_b32 v2, s21, v2
    v_xor_b32 v3, 64, v2                  ; TR1''')
    for i in range(16): a(f'v_mov_b32 v{16+i}, 0')
    U = lambda i, j: 128 + 8 * i + 2 * j
    for i in range(14):
        a.wait(vm=f'x{i}')
        if i == 0: st(1)
        for j in range(4):
            a(f'v_lshlrev_b32 v{U(i,j)}, 16, v{64+4*i+j}')
            a(f'v_and_b32 v{U(i,j)+1}, 0xffff0000, v{64+4*i+j}')
        for j in range(4):
            a(f'v_pk_add_f32 v[{16+2*j}:{17+2*j}], v[{16+2*j}:{17+2*j}], v[{U(i,j)}:{U(i,j)+1}]')
            a(f'v_pk_fma_f32 v[{24+2*j}:{25+2*j}], v[{U(i,j)}:{U(i,j)+1}], v[{U(i,j)}:{U(i,j)+1}], v[{24+2*j}:{25+2*j}]')
        bg(1)
    for j in range(8): a(f'v_permlane32_swap_b32 v{16+j}, v{24+j}')
    for j in range(8): a(f'v_add_f32 v{16+j}, v{16+j}, v{24+j}')
    bg(1)
    for i in range(4): a(f'v_permlane16_swap_b32 v{16+2*i}, v{17+2*i}')
    for i in range(4): a(f'v_add_f32 v{16+2*i}, v{16+2*i}, v{17+2*i}')
    a(f'''v_lshlrev_b32 v10, 8, v10
    v_lshl_add_u32 v10, v6, 5, v10
    v_bfe_u32 v11, v0, 4, 1
    v_lshl_add_u32 v10, v11, 2, v10
    s_lshl_b32 s23, s6, 9
    s_add_u32 s24, s23, {STATP}
    v_add_u32 v10, s24, v10''')
    for i in range(4): a(f'v_add_f32_dpp v{16+2*i}, v{16+2*i}, v{16+2*i} row_ror:8 row_mask:0xf bank_mask:0xf')
    a.ds('ds_write2_b32 v10, v16, v18 offset0:0 offset1:2')
    a.ds('ds_write2_b32 v10, v20, v22 offset0:4 offset1:6')
    a.wait(vm='sl')
    a.ds(f'ds_write_b128 v9, v[120:123] offset:{X2S}')
    a.ds(f'ds_write_b128 v9, v[124:127] offset:{X2S + 4096}')
    a(f'v_lshrrev_b32 v11, 2, v1\nv_add_u32 v60, {STATP}, v11')
    bg(2)
    a.wait(ds='all')
    a('s_barrier')
    for w in range(4): a.ds(f'ds_read2st64_b32 v[{16+2*w}:{17+2*w}], v60 offset0:{2*w} offset1:{2*w+1}')
    a(f'''s_add_u32 s24, s23, {RS}
    v_add_u32 v11, s24, v11
    v_lshl_add_u32 v61, v6, 5, s24''')
    bg(2)
    a.wait(ds='all')
    a(f'''v_pk_add_f32 v[16:17], v[16:17], v[18:19]
    v_pk_add_f32 v[20:21], v[20:21], v[22:23]
    v_pk_add_f32 v[16:17], v[16:17], v[20:21]
    v_mul_f32 v16, {f2u(1/448)}, v16
    v_mul_f32 v17, {f2u(1/448)}, v17
    v_fma_f32 v17, -v16, v16, v17
    v_max_f32 v17, 0, v17
    v_cvt_pk_bf16_f32 v17, 0, v17
    v_add_f32 v17, {f2u(1e-5)}, v17
    v_cvt_pk_bf16_f32 v17, 0, v17
    v_sqrt_f32 v17, v17
    v_cvt_pk_bf16_f32 v16, 0, v16
    v_cvt_pk_bf16_f32 v17, 0, v17
    v_rcp_f32 v17, v17
    v_sub_f32 v16, 0, v16
    v_mul_f32 v16, v16, v17''')
    a.ds('ds_write2st64_b32 v11, v17, v16 offset0:0 offset1:1')
    bg(1)
    a.wait(ds='all')
    a.ds('ds_read_b128 v[16:19], v61'); a.ds('ds_read_b128 v[20:23], v61 offset:16')
    a.ds('ds_read_b128 v[24:27], v61 offset:256'); a.ds('ds_read_b128 v[28:31], v61 offset:272')
    bg(2)
    a.wait(vm='cs', ds='all')
    for i in range(14):
        for j in range(4):
            u = U(i, j)
            a(f'v_pk_fma_f32 v[{u}:{u+1}], v[{u}:{u+1}], v[{16+2*j}:{17+2*j}], v[{24+2*j}:{25+2*j}]')
        for j in range(4):
            u = U(i, j)
            a(f'v_pk_fma_f32 v[{u}:{u+1}], v[{u}:{u+1}], v[{32+2*i}:{33+2*i}], v[{32+2*i}:{33+2*i}] op_sel:[0,0,1] op_sel_hi:[1,0,1]')
        for j in range(4):
            u = U(i, j)
            a(f'v_cvt_pk_bf16_f32 v{64+4*i+j}, v{u}, v{u+1}')
        a.ds(f'ds_write_b128 v9, v[{64+4*i}:{67+4*i}] offset:{4096*i}')
        bg(1)
    gate_lvl[0] = 1
    a.wait(ds='all')
    a('s_barrier')
    st(2)
    ACC = lambda tt, ft: 64 + 32 * tt + 16 * ft
    BB = lambda k: 16 + 4 * (k % 4)
    def bread(tt, ks):
        k = 28 * tt + ks
        a.ds(f'ds_read_b64_tr_b16 v[{BB(k)}:{BB(k)+1}], v{2+tt} offset:{2048*ks}', f'b{k}')
        a.ds(f'ds_read_b64_tr_b16 v[{BB(k)+2}:{BB(k)+3}], v{2+tt} offset:{2048*ks+512}', f'b{k}')
    def epi_ops(tt):
        L = []
        for ft in range(2):
            for q in range(2):
                k2 = 2 * ft + q
                b = ACC(tt, ft) + 8 * q
                T = [4 + e for e in range(8)]
                for e in range(8): L.append(f'v_mul_f32 v{T[e]}, s25, v{b+e}')
                for e in range(8): L.append(f'v_exp_f32 v{T[e]}, v{T[e]}')
                for e in range(8): L.append(f'v_add_f32 v{T[e]}, 1.0, v{T[e]}')
                for e in range(8): L.append(f'v_rcp_f32 v{T[e]}, v{T[e]}')
                for e in range(8): L.append(f'v_mul_f32 v{T[e]}, v{b+e}, v{T[e]}')
                h = 32 + 8 * k2 + 4 * tt
                for e in range(4): L.append(f'v_cvt_pk_bf16_f32 v{h+e}, v{T[2*e]}, v{T[2*e+1]}')
                L.append(('vm', f'buffer_store_dwordx4 v[{h}:{h+3}], v{14+tt}, s[12:15], s{26 + k2//2} offen offset:{(k2%2)*2048} sc1', 'hst'))
        return L
    a(f's_mov_b32 s25, {0x80000000 | LOG2E}\ns_mov_b32 s26, s50\ns_add_u32 s27, s50, 4096')
    def emit_op(o):
        if isinstance(o, tuple): a.vm(o[1], o[2])
        else: a(o)
    bread(0, 0); bread(0, 1); bread(0, 2)
    epi = []
    for tt in range(2):
        if tt == 1: epi = epi_ops(0)
        for ks in range(28):
            k = 28 * tt + ks
            if k + 3 < 56: nk = k + 3
            else: nk = None
            a.wait(vm=f'w1_{ks}', ds=f'b{k}')
            for ft in range(2):
                c = '0' if ks == 0 else f'v[{ACC(tt,ft)}:{ACC(tt,ft)+15}]'
                a(f'v_mfma_f32_32x32x16_bf16 v[{ACC(tt,ft)}:{ACC(tt,ft)+15}], {W1(ks,ft)}, v[{BB(k)}:{BB(k)+3}], {c}')
                if ft == 0 and nk is not None: bread(nk // 28, nk % 28)
                if ft == 1: bg(1)
                if tt == 1 and ks >= 1:
                    for _ in range(4 if ft == 0 else 3):
                        if epi: emit_op(epi.pop(0))
            if tt == 1 and ks == 8: gate_lvl[0] = 2
        st(3 + tt)
    while epi: emit_op(epi.pop(0))
    epi = epi_ops(1)
    n = 0
    while epi:
        emit_op(epi.pop(0)); n += 1
        if n % 16 == 0: bg(1)
    bg(100)
    assert not bgq
    a(f'''s_lshl_b32 s28, s4, 2
    s_add_u32 s28, s28, s6
    s_lshl_b32 s28, s28, 5
    s_add_u32 s28, s28, {FLAGS}
    s_lshl_b32 s29, s5, 2
    s_add_u32 s29, s29, s28
    v_mov_b32 v4, s29
    v_mov_b32 v5, 1
    v_lshrrev_b32 v6, 2, v1
    v_add_u32 v6, s28, v6''')
    a.wait(vm='hst')
    a('s_mov_b64 exec, 1')
    a.vm('global_store_dword v4, v5, s[8:9] sc1', 'flag')
    a('s_mov_b64 exec, -1')
    st(5)
    A2 = lambda dt, tt: 64 + 16 * (2 * dt + tt)
    def g2(q, first=False):
        for k2 in range(4):
            for tt in range(2):
                a.wait(vm=[f'w2_{q}', f'h{q}_{k2}_{tt}'])
                for dt in range(2):
                    c = '0' if (first and k2 == 0) else f'v[{A2(dt,tt)}:{A2(dt,tt)+15}]'
                    a(f'v_mfma_f32_32x32x16_bf16 v[{A2(dt,tt)}:{A2(dt,tt)+15}], {W2(q,k2,dt)}, {HB(q,k2,tt)}, {c}')
    g2(0, True)
    a('s_barrier')
    a(f'''s_mov_b32 s30, 0
    s_mov_b64 exec, 0x7f
    M_poll:
    global_load_dword v7, v6, s[8:9] sc1
    s_add_u32 s30, s30, 1
    s_waitcnt vmcnt(0)
    v_cmp_eq_u32 vcc, 1, v7
    s_cmp_eq_u32 vcc_lo, 0x7f
    s_cbranch_scc1 M_poll_done
    s_sleep 1
    s_cmp_lt_u32 s30, 0x100000
    s_cbranch_scc1 M_poll
    M_poll_done:
    s_mov_b64 exec, -1''')
    a.reset_counters()
    st(6)
    for q in range(1, 7):
        for k2 in range(4):
            if k2 == 2: a(f's_add_u32 s{50+q}, s{50+q}, 4096')
            for tt in range(2):
                a.vm(f'buffer_load_dwordx4 {HB(q,k2,tt)}, v{14+tt}, s[12:15], s{50+q} offen offset:{(k2%2)*2048} sc1', f'h{q}_{k2}_{tt}')
        if q == 2:
            a(f'''v_bfe_u32 v8, v0, 5, 1
            v_lshlrev_b32 v8, 4, v8
            s_lshl_b32 s31, s5, 8
            s_lshr_b32 s32, s20, 3
            s_add_u32 s31, s31, s32
            s_add_u32 s31, s31, {MOD + 5*448*4}
            v_add_u32 v8, s31, v8''')
            for i in range(4): a.vm(f'global_load_dwordx4 v[{16+4*i}:{19+4*i}], v8, s[8:9] offset:{32*i}', 'gb')
        if q >= 2: g2(q - 1)
    g2(6)
    st(7)
    for u in range(1, 4):
        a(f's_xor_b32 s33, s6, {u}\ns_mul_i32 s33, s33, 12288\ns_add_u32 s33, s33, {4096*(u-1)}\nv_add_u32 v{8+u}, s33, v1')
    a(f'''s_mul_i32 s33, s6, 12288
    v_add_u32 v12, s33, v1
    v_bfe_u32 v13, v0, 5, 1
    v_lshlrev_b32 v14, 9, v13
    v_sub_u32 v14, v2, v14
    s_lshl_b32 s34, s20, 2
    s_add_u32 s34, s34, {X2S}
    v_add_u32 v14, s34, v14
    v_and_b32 v15, 31, v0
    v_mul_u32_u24 v15, 896, v15
    v_lshl_add_u32 v15, v13, 4, v15
    s_lshl_b32 s34, s4, 1
    s_and_b32 s35, s6, 1
    s_add_u32 s34, s34, s35
    s_mul_i32 s34, s34, {32*896}
    s_lshl_b32 s35, s5, 7
    s_add_u32 s34, s34, s35
    s_lshr_b32 s35, s20, 4
    s_add_u32 s34, s34, s35
    v_add_u32 v15, s34, v15''')
    for u in range(1, 4):
        for i in range(4):
            a.ds(f'ds_write_b128 v{8+u}, v[{64+16*u+4*i}:{67+16*u+4*i}] offset:{1024*i}')
    for i in range(4): a.ds(f'ds_read_b64_tr_b16 v[{32+2*i}:{33+2*i}], v14 offset:{1024*i}')
    a.wait(ds='all')
    a('s_barrier')
    for u in range(3):
        for i in range(4):
            a.ds(f'ds_read_b128 v[{80+16*u+4*i}:{83+16*u+4*i}], v12 offset:{4096*u+1024*i}', f'r{u}_{i}')
    for i in range(4):
        a(f'v_lshlrev_b32 v{40+4*i}, 16, v{32+2*i}\nv_and_b32 v{41+4*i}, 0xffff0000, v{32+2*i}')
        a(f'v_lshlrev_b32 v{42+4*i}, 16, v{33+2*i}\nv_and_b32 v{43+4*i}, 0xffff0000, v{33+2*i}')
    for u in range(3):
        for i in range(4):
            a.wait(ds=f'r{u}_{i}')
            for k in range(2):
                r = 64 + 4 * i + 2 * k; s_ = 80 + 16 * u + 4 * i + 2 * k
                a(f'v_pk_add_f32 v[{r}:{r+1}], v[{r}:{r+1}], v[{s_}:{s_+1}]')
    a.wait(vm='gb')
    for k in range(8):
        a(f'v_pk_fma_f32 v[{40+2*k}:{41+2*k}], v[{64+2*k}:{65+2*k}], v[{16+2*k}:{17+2*k}], v[{40+2*k}:{41+2*k}]')
    for k in range(8): a(f'v_cvt_pk_bf16_f32 v{32+k}, v{40+2*k}, v{41+2*k}')
    for pr in range(2):
        a(f'v_permlane32_swap_b32 v{32+4*pr}, v{34+4*pr}\nv_permlane32_swap_b32 v{33+4*pr}, v{35+4*pr}')
    for pr in range(2):
        a(f'global_store_dwordx4 v15, v[{32+4*pr}:{35+4*pr}], s[10:11] offset:{32*pr}')
    if ts: stamp_store(a, 2, 8, 'M_ts0')
    a.label('M_end')
    a('s_endpgm')
    return a.text(), kernel_desc('mlp_kernel', 512, 102 if ts else 64, 256)
```

```python
from asmlib import *
from layout import *

N_MOD, N_ST, N_RL = 84, 128, 196
GRID = N_MOD + N_ST + 2 * N_RL
LDS = 16384

def stamp_store(a, launch, nst, lab):
    a(f'''s_waitcnt lgkmcnt(0)
    s_lshl_b32 s96, s2, 6
    s_add_u32 s96, s96, {TS + launch * 65536}
    s_add_u32 s98, s8, s96
    s_addc_u32 s99, s9, 0
    v_mov_b32 v1, 0
    v_cmp_eq_u32 vcc, 0, v0
    s_and_saveexec_b64 s[96:97], vcc
    s_cbranch_execz {lab}''')
    for q in range(nst):
        a(f'v_mov_b32 v2, s{80+2*q}\nv_mov_b32 v3, s{81+2*q}\nglobal_store_dwordx2 v1, v[2:3], s[98:99] offset:{8*q}\ns_nop 1')
    a.label(lab)

def gen_prep(ts=False):
    a = Asm()
    a.raw(kernel_header('prep_kernel'))
    st = (lambda i: a(f's_memrealtime s[{80+2*i}:{81+2*i}]')) if ts else (lambda i: None)
    st(0)
    a(f'''s_load_dwordx2 s[8:9], s[0:1], {KA['ws']}
    s_cmp_lt_u32 s2, {N_MOD}
    s_cbranch_scc1 P_mod
    s_cmp_lt_u32 s2, {N_MOD + N_ST}
    s_cbranch_scc1 P_stats
    s_cmp_lt_u32 s2, {GRID}
    s_cbranch_scc1 P_relay
    s_endpgm''')
    a.label('P_mod'); a.reset_counters()
    a(f'''s_load_dwordx2 s[4:5], s[0:1], {KA['c']}
    s_load_dwordx2 s[12:13], s[0:1], {KA['wmod']}
    v_and_b32 v1, 3, v0
    v_lshrrev_b32 v2, 2, v0
    v_mul_u32_u24 v3, 5376, v2
    v_lshl_add_u32 v3, v1, 4, v3
    s_lshl_b32 s3, s2, 6
    v_lshlrev_b32 v4, 1, v2
    s_mov_b32 s14, {448*5376}
    s_mov_b32 s15, 0x20000
    s_waitcnt lgkmcnt(0)''')
    for i in range(7):
        a.vm(f'global_load_ushort v{10+i}, v4, s[4:5] offset:{128*i}', 'c')
    for i in range(7):
        a.vm(f'buffer_load_dwordx4 v[{20+4*i}:{23+4*i}], v3, s[12:15], s3 offen', f'w{i}')
        if i < 6: a(f's_add_u32 s3, s3, {64*5376}')
    a(f'''s_cmp_lg_u32 s2, 0
    s_cbranch_scc1 P_mod_nz
    v_mov_b32 v60, 0
    v_mov_b32 v61, 0
    v_mov_b32 v62, 0
    v_mov_b32 v63, 0
    v_lshlrev_b32 v5, 4, v0
    v_add_u32 v5, {FLAGS}, v5
    global_store_dwordx4 v5, v[60:63], s[8:9]
    s_waitcnt vmcnt(0)
    P_mod_nz:''')
    for q in range(8): a(f'v_mov_b32 v{50+q}, 0')
    a.wait(vm='c')
    st(1)
    a(f's_mov_b32 s16, {0x80000000 | LOG2E}')
    for i in range(7): a(f'v_lshlrev_b32 v{10+i}, 16, v{10+i}')
    for i in range(7): a(f'v_mul_f32 v{60+i}, s16, v{10+i}')
    for i in range(7): a(f'v_exp_f32 v{60+i}, v{60+i}')
    for i in range(7): a(f'v_add_f32 v{60+i}, 1.0, v{60+i}')
    for i in range(7): a(f'v_rcp_f32 v{60+i}, v{60+i}')
    for i in range(7): a(f'v_mul_f32 v{10+i}, v{10+i}, v{60+i}')
    for i in range(7): a(f'v_cvt_pk_bf16_f32 v{10+i}, v{10+i}, 0')
    for i in range(7): a(f'v_lshlrev_b32 v{60+i}, 16, v{10+i}')
    for i in range(7):
        a.wait(vm=f'w{i}')
        for q in range(4):
            a(f'v_dot2c_f32_bf16 v{50+2*q}, v{20+4*i+q}, v{10+i}')
            a(f'v_dot2c_f32_bf16 v{51+2*q}, v{20+4*i+q}, v{60+i}')
    st(2)
    for i in range(4): a(f'v_permlane32_swap_b32 v{50+2*i}, v{51+2*i}')
    for i in range(4): a(f'v_add_f32 v{50+2*i}, v{50+2*i}, v{51+2*i}')
    a('v_permlane16_swap_b32 v50, v52\nv_permlane16_swap_b32 v54, v56')
    a('v_add_f32 v50, v50, v52\nv_add_f32 v54, v54, v56')
    for sh in (8, 4):
        a(f'v_add_f32_dpp v50, v50, v50 row_ror:{sh} row_mask:0xf bank_mask:0xf')
        a(f'v_add_f32_dpp v54, v54, v54 row_ror:{sh} row_mask:0xf bank_mask:0xf')
    a('''v_lshrrev_b32 v6, 6, v0
    v_lshlrev_b32 v6, 7, v6
    v_lshl_add_u32 v6, v1, 5, v6
    v_bfe_u32 v7, v0, 4, 1
    v_lshl_add_u32 v6, v7, 3, v6
    v_bfe_u32 v7, v0, 5, 1
    v_lshl_add_u32 v6, v7, 2, v6
    ds_write_b32 v6, v50
    ds_write_b32 v6, v54 offset:16
    s_waitcnt lgkmcnt(0)
    s_barrier
    v_cmp_gt_u32 vcc, 32, v0
    s_and_saveexec_b64 s[20:21], vcc
    s_cbranch_execz P_mod_end
    v_lshlrev_b32 v6, 2, v0
    ds_read2_b32 v[10:11], v6 offset0:0 offset1:32
    ds_read2_b32 v[12:13], v6 offset0:64 offset1:96
    s_lshl_b32 s3, s2, 7''')
    a(f'''s_add_u32 s3, s3, {MOD}
    v_add_u32 v6, s3, v6
    s_waitcnt lgkmcnt(0)
    v_add_f32 v10, v10, v11
    v_add_f32 v12, v12, v13
    v_add_f32 v10, v10, v12
    v_cvt_pk_bf16_f32 v10, 0, v10
    global_store_dword v6, v10, s[8:9]
    s_sub_u32 s4, s2, 42
    s_cmp_ge_u32 s4, 28
    s_cbranch_scc1 P_mod_end
    s_cmp_ge_u32 s4, 14
    s_cbranch_scc1 P_mod_cb
    s_lshl_b32 s4, s4, 3
    s_add_u32 s4, s4, {CS + 4}
    s_branch P_mod_cs
    P_mod_cb:
    s_lshl_b32 s4, s4, 3
    s_add_u32 s4, s4, {CS - 112}
    v_add_f32 v10, 1.0, v10
    v_cvt_pk_bf16_f32 v10, 0, v10
    P_mod_cs:
    v_mul_u32_u24 v6, 112, v0
    v_add_u32 v6, s4, v6
    global_store_dword v6, v10, s[8:9]
    P_mod_end:
    s_mov_b64 exec, -1''')
    st(3)
    if ts: stamp_store(a, 0, 4, 'P_ts0')
    a('s_endpgm')
    a.label('P_stats'); a.reset_counters()
    a(f'''s_load_dwordx2 s[12:13], s[0:1], {KA['u']}
    s_sub_u32 s3, s2, {N_MOD}
    v_and_b32 v1, 63, v0
    v_lshrrev_b32 v2, 6, v0
    s_mul_i32 s4, s3, {16*896}
    v_mul_u32_u24 v3, {4*896}, v2
    v_lshl_add_u32 v3, v1, 4, v3
    v_mov_b32 v4, 0x40000000
    v_cmp_gt_u32 vcc, 56, v1
    s_mov_b32 s14, {2048*896}
    s_mov_b32 s15, 0x20000
    v_cndmask_b32 v3, v4, v3, vcc
    s_waitcnt lgkmcnt(0)''')
    for q in range(4):
        a.vm(f'buffer_load_dwordx4 v[{20+4*q}:{23+4*q}], v3, s[12:15], s4 offen offset:{896*q}', f'x{q}')
    a(f'''v_mul_u32_u24 v5, {4*960}, v2
    v_lshl_add_u32 v5, v1, 4, v5
    v_bfe_u32 v6, v0, 2, 2                ; r4
    v_bfe_u32 v7, v0, 5, 1                ; oct
    v_lshl_add_u32 v6, v7, 3, v6
    v_mul_u32_u24 v6, 960, v6
    v_and_b32 v8, 3, v0
    v_lshl_add_u32 v6, v8, 3, v6
    v_bfe_u32 v8, v0, 4, 1                ; dblk
    v_lshl_add_u32 v6, v8, 5, v6
    v_lshl_add_u32 v6, v2, 6, v6
    v_bfe_u32 v9, v0, 1, 3
    v_lshl_add_u32 v9, v8, 3, v9
    v_lshlrev_b32 v9, 13, v9
    v_and_b32 v8, 1, v0
    v_lshl_add_u32 v9, v8, 5, v9
    v_lshl_add_u32 v9, v7, 4, v9
    v_lshl_add_u32 v9, v2, 17, v9         ; + wave*131072
    s_lshl_b32 s5, s3, 6
    v_add_u32 v9, s5, v9
    s_mov_b32 s16, 0x3f803f80
    v_readfirstlane_b32 s6, v2''')
    for q in range(8): a(f'v_mov_b32 v{40+q}, 0')
    a('s_mov_b32 s18, -1\ns_mov_b32 s19, 0x00ffffff')
    for q in range(4):
        a.wait(vm=f'x{q}')
        if q == 0: st(1)
        a(f's_mov_b64 exec, s[18:19]')
        a.ds(f'ds_write_b128 v5, v[{20+4*q}:{23+4*q}] offset:{960*q}')
        a(f's_mov_b64 exec, -1')
        for j in range(4):
            a(f'v_dot2c_f32_bf16 v{40+q}, s16, v{20+4*q+j}')
            a(f'v_dot2c_f32_bf16 v{44+q}, v{20+4*q+j}, v{20+4*q+j}')
    a.wait(ds='all')
    a('s_barrier')
    for r in range(4):
        if r == 3: a('s_cmp_ge_u32 s6, 2\ns_cbranch_scc1 P_st_skip3')
        a(f'ds_read_b64_tr_b16 v[{48+4*r}:{49+4*r}], v6 offset:{256*r}')
        a(f'ds_read_b64_tr_b16 v[{50+4*r}:{51+4*r}], v6 offset:{256*r + 4*960}')
    a.label('P_st_skip3')
    for i in range(4): a(f'v_permlane32_swap_b32 v{40+2*i}, v{41+2*i}')
    for i in range(4): a(f'v_add_f32 v{40+2*i}, v{40+2*i}, v{41+2*i}')
    a('v_permlane16_swap_b32 v40, v42\nv_permlane16_swap_b32 v44, v46')
    a('v_add_f32 v40, v40, v42\nv_add_f32 v44, v44, v46')
    a('s_waitcnt lgkmcnt(0)')
    for r in range(4):
        if r == 3: a('s_cmp_ge_u32 s6, 2\ns_cbranch_scc1 P_st_skip3b')
        a(f'global_store_dwordx4 v9, v[{48+4*r}:{51+4*r}], s[8:9]')
        if r < 3: a(f'v_add_u32 v9, {4*131072}, v9')
    a.label('P_st_skip3b')
    for sh in (8, 4, 2, 1):
        a(f'v_add_f32_dpp v40, v40, v40 row_ror:{sh} row_mask:0xf bank_mask:0xf')
        a(f'v_add_f32_dpp v44, v44, v44 row_ror:{sh} row_mask:0xf bank_mask:0xf')
    import struct
    inv448 = struct.unpack('<I', struct.pack('<f', 1.0 / 448))[0]
    eps = struct.unpack('<I', struct.pack('<f', 1e-5))[0]
    a(f'''v_mul_f32 v40, {inv448}, v40
    v_mul_f32 v44, {inv448}, v44
    v_fma_f32 v44, -v40, v40, v44
    v_max_f32 v44, 0, v44
    v_cvt_pk_bf16_f32 v44, 0, v44
    v_add_f32 v44, {eps}, v44
    v_cvt_pk_bf16_f32 v44, 0, v44
    v_sqrt_f32 v44, v44
    v_bfe_u32 v10, v0, 4, 1
    v_bfe_u32 v11, v0, 5, 1
    v_lshl_add_u32 v10, v10, 1, v11
    v_lshl_add_u32 v10, v2, 2, v10
    v_cvt_pk_bf16_f32 v44, v40, v44
    s_lshl_b32 s5, s3, 6
    s_add_u32 s5, s5, {ST}
    v_lshl_add_u32 v10, v10, 2, s5
    s_mov_b32 exec_lo, 0x00010001
    s_mov_b32 exec_hi, 0x00010001
    global_store_dword v10, v44, s[8:9]
    s_mov_b64 exec, -1''')
    st(2)
    if ts: stamp_store(a, 0, 3, 'P_ts1')
    a('s_endpgm')
    a.label('P_relay'); a.reset_counters()
    a(f'''s_sub_u32 s3, s2, {N_MOD + N_ST}
    s_cmp_ge_u32 s3, {N_RL}
    s_cbranch_scc1 P_rl_w2
    s_load_dwordx2 s[12:13], s[0:1], {KA['w1']}
    s_mul_hi_u32 s4, s3, 0x24924925
    s_mul_i32 s5, s4, 7
    s_sub_u32 s5, s3, s5
    s_movk_i32 s16, 3584
    s_mul_i32 s17, s5, {64*3584}
    s_lshl_b32 s18, s4, 7
    s_add_u32 s17, s17, s18
    s_mul_i32 s18, s4, 28
    s_lshl_b32 s19, s5, 2
    s_add_u32 s18, s18, s19
    s_lshl_b32 s18, s18, 11
    s_add_u32 s18, s18, {W1F}
    s_mov_b32 s20, 3
    s_movk_i32 s21, 512
    s_branch P_rl_go
    P_rl_w2:
    s_load_dwordx2 s[12:13], s[0:1], {KA['w2']}
    s_sub_u32 s3, s3, {N_RL}
    s_mul_hi_u32 s4, s3, 0x24924925     ; rb
    s_mul_i32 s5, s4, 7
    s_sub_u32 s5, s3, s5                ; pd
    s_movk_i32 s16, 896
    s_mul_i32 s17, s4, {64*896}
    s_lshl_b32 s18, s5, 7
    s_add_u32 s17, s17, s18
    s_and_b32 s19, s4, 3                ; w
    s_lshl_b32 s18, s5, 2
    s_add_u32 s18, s18, s19
    s_mul_i32 s18, s18, 28
    s_and_b32 s19, s4, -4               ; 4*p'
    s_add_u32 s18, s18, s19
    s_lshl_b32 s18, s18, 11
    s_add_u32 s18, s18, {W2F}
    s_mov_b32 s20, 2
    s_movk_i32 s21, 1024
    P_rl_go:
    v_lshrrev_b32 v1, 3, v0             ; row 0..31
    v_and_b32 v2, 7, v0                 ; granule
    v_mul_lo_u32 v3, v1, s16
    v_lshl_add_u32 v3, v2, 4, v3
    s_mov_b32 s14, {448*3584}
    s_mov_b32 s15, 0x20000
    s_lshl_b32 s22, s16, 5
    s_add_u32 s22, s22, s17
    s_waitcnt lgkmcnt(0)''')
    a.vm('buffer_load_dwordx4 v[20:23], v3, s[12:15], s17 offen', 'a')
    a.vm('buffer_load_dwordx4 v[24:27], v3, s[12:15], s22 offen', 'b')
    a('''v_lshlrev_b32 v4, 4, v0
    v_bfe_u32 v5, v0, 4, 1              ; (row>>1)&1
    v_lshlrev_b32 v5, 6, v5
    v_xor_b32 v4, v4, v5
    v_lshrrev_b32 v6, 6, v0             ; wave
    v_bfe_u32 v7, v0, 5, 1              ; h
    v_lshlrev_b32 v7, s20, v7
    v_lshl_add_u32 v7, v6, 4, v7
    v_bfe_u32 v8, v0, 2, 2              ; r4
    v_add_u32 v7, v7, v8
    v_lshlrev_b32 v7, 7, v7
    v_bfe_u32 v8, v0, 4, 1
    v_lshl_add_u32 v7, v8, 5, v7
    v_and_b32 v8, 3, v0
    v_lshl_add_u32 v7, v8, 3, v7
    v_bfe_u32 v8, v0, 3, 1              ; (r4>>1)&1
    v_lshlrev_b32 v8, 6, v8
    v_xor_b32 v7, v7, v8
    v_add_u32 v8, s21, v7               ; second
    v_xor_b32 v9, 64, v7
    v_xor_b32 v10, 64, v8
    v_and_b32 v11, 63, v0
    v_lshlrev_b32 v11, 4, v11
    v_lshl_add_u32 v11, v6, 11, v11
    v_add_u32 v11, s18, v11''')
    a.wait(vm='a')
    st(1)
    a.ds('ds_write_b128 v4, v[20:23]')
    a.wait(vm='b')
    a.ds('ds_write_b128 v4, v[24:27] offset:4096')
    a.wait(ds='all')
    a('''s_barrier
    ds_read_b64_tr_b16 v[20:21], v7
    ds_read_b64_tr_b16 v[22:23], v8
    ds_read_b64_tr_b16 v[24:25], v9
    ds_read_b64_tr_b16 v[26:27], v10
    s_waitcnt lgkmcnt(2)
    global_store_dwordx4 v11, v[20:23], s[8:9]
    s_waitcnt lgkmcnt(0)
    global_store_dwordx4 v11, v[24:27], s[8:9] offset:1024''')
    st(2)
    if ts: stamp_store(a, 0, 3, 'P_ts2')
    a('s_endpgm')
    return a.text(), kernel_desc('prep_kernel', 72, 102 if ts else 32, 72)
```

```python
XT   = 0x000000
ST   = 0x200000
MOD  = 0x210000
CS   = 0x218000
FLAGS= 0x220000
W1F  = 0x300000
W2F  = 0x500000
X2T  = 0x700000
HF   = 0x900000
TS   = 0x8000000
KA = dict(u=0, Are=8, Aim=16, Bre=24, Bim=32, Cre=40, Cim=48, logdt=56, dskip=64, bx=72, w1=80, w2=88, c=96, wmod=104, out=112, dbg=120, ws=128)
LOG2E = 0x3fb8aa3b
```

```python
import sys
from asmlib import *
from layout import *
import k_prep
ts = '--ts' in sys.argv
only = [x for x in sys.argv[1:] if not x.startswith('--')]
out = only[0]
which = only[1] if len(only) > 1 else 'pcm'
hdr = open('adaLN_cond__ssm_conv_s4__dense_activation_silu__prompt.s.ref').read().split('; Override launch')[0]
launch = ''; body = ''; desc = ''
if 'p' in which:
    b, d = k_prep.gen_prep(ts); body += b; desc += d
    launch += f'; @launch kernel=prep_kernel grid=({k_prep.GRID},1,1) block=(256,1,1) lds={k_prep.LDS}\n'
if 'c' in which:
    import k_conv
    b, d = k_conv.gen_conv(ts, '--dbgk' in sys.argv); body += b; desc += d
    launch += f'; @launch kernel=conv_kernel grid=({k_conv.GRID},1,1) block=(512,1,1) lds={k_conv.LDS}\n'
if 'm' in which:
    import k_mlp
    b, d = k_mlp.gen_mlp(ts); body += b; desc += d
    launch += f'; @launch kernel=mlp_kernel grid=({k_mlp.GRID},1,1) block=(256,1,1) lds={k_mlp.LDS}\n'
s = hdr + launch + '.amdgcn_target "amdgcn-amd-amdhsa--gfx950"\n.text\n' + body + '.section .rodata,"a"\n' + desc
open(out, 'w').write(s)
```

```python
from asmlib import *
from layout import *
from k_prep import stamp_store
import struct
f2u = lambda f: struct.unpack('<I', struct.pack('<f', f))[0]

GRID = 224
PITCH = 1056
XY_SZ = 53 * PITCH
KD0 = 2 * XY_SZ
KD_SZ = 1536
KR0 = KD0 + 2 * KD_SZ
KR_B = 4160
KR_SZ = 8320
U0 = KR0 + 2 * KR_SZ
U_SZ = 4576
X0 = U0 + 2 * U_SZ
X_SZ = 4096
LDS = X0 + 2 * X_SZ
RED = 0

def gen_conv(ts=False, dbgK=False):
    a = Asm()
    a.raw(kernel_header('conv_kernel'))
    st = (lambda i: a(f'{TSOP} s[{80+2*i}:{81+2*i}]')) if ts else (lambda i: None)
    st(0)
    a(f'''s_cmp_ge_u32 s2, {GRID}
    s_cbranch_scc1 C_end
    s_load_dwordx2 s[8:9], s[0:1], {KA['ws']}
    s_load_dwordx4 s[12:15], s[0:1], {KA['Are']}
    s_load_dwordx4 s[16:19], s[0:1], {KA['Bre']}
    s_load_dwordx4 s[20:23], s[0:1], {KA['Cre']}
    s_load_dwordx4 s[24:27], s[0:1], {KA['logdt']}
    v_lshrrev_b32 v1, 6, v0
    s_lshl_b32 s3, s2, 10
    v_readfirstlane_b32 s4, v1            ; wave
    v_lshl_add_u32 v2, v0, 1, s3
    s_lshl_b32 s5, s2, 13
    v_lshl_add_u32 v3, v0, 4, s5
    v_lshrrev_b32 v4, 2, v0
    v_and_b32 v5, 1, v0
    v_lshl_add_u32 v4, v4, 1, v5
    v_lshlrev_b32 v5, 5, v4
    v_add_u32 v5, {ST}, v5
    s_lshl_b32 s6, s2, 2
    s_lshl_b32 s7, s2, 3
    s_waitcnt lgkmcnt(0)''')
    for i, b in enumerate((12, 14, 16, 18, 20, 22)):
        a.vm(f'global_load_ushort v{10+i}, v2, s[{b}:{b+1}]', 'par')
    a(f'''s_load_dword s28, s[24:25], s6
    s_load_dword s29, s[26:27], s6
    s_add_u32 s30, s8, {MOD}
    s_addc_u32 s31, s9, 0
    s_add_u32 s30, s30, s7
    s_addc_u32 s31, s31, 0
    s_load_dwordx2 s[32:33], s[30:31], 0
    s_load_dwordx2 s[34:35], s[30:31], {448*4}
    s_load_dwordx2 s[36:37], s[30:31], {896*4}''')
    a.vm('global_load_dwordx4 v[16:19], v3, s[8:9]', 'xt')
    a.vm('global_load_dwordx4 v[20:23], v5, s[8:9]', 'st')
    a.vm('global_load_dwordx4 v[24:27], v5, s[8:9] offset:16', 'st')
    a(f'''s_lshr_b32 s38, s4, 2
    v_and_b32 v6, 255, v0                 ; n / c
    s_mul_i32 s39, s38, {XY_SZ}
    v_lshl_add_u32 v7, v6, 2, s39
    v_mov_b32 v8, 0
    v_mov_b32 v9, 0
    v_cmp_gt_u32 vcc, 60, v6
    s_and_saveexec_b64 s[40:41], vcc
    s_mul_i32 s42, s38, {U_SZ}
    s_add_u32 s42, s42, {U0}
    v_lshl_add_u32 v28, v6, 3, s42
    ds_write_b64 v28, v[8:9]
    v_cmp_gt_u32 vcc, 4, v6
    s_and_b64 exec, exec, vcc
    s_mul_i32 s42, s38, {KR_SZ}
    s_add_u32 s42, s42, {KR0 + 4096}
    v_lshl_add_u32 v28, v6, 3, s42
    ds_write_b64 v28, v[8:9]
    ds_write_b64 v28, v[8:9] offset:{KR_B}
    s_mul_i32 s42, s38, {KD_SZ}
    s_add_u32 s42, s42, {KD0}
    v_mov_b32 v28, s42
    ds_write_b16 v28, v8 offset:{641*2}
    s_mov_b64 exec, s[40:41]
    v_lshlrev_b32 v28, 3, v6
    v_sub_u32 v28, 2047, v28''')
    for e in range(9):
        a(f'v_subrev_u32 v{30+e}, {e}, v28')
    for e in range(9):
        a(f'v_cvt_f32_i32 v{44+e}, v{30+e}')
    for e in range(9):
        a(f'v_cvt_pk_bf16_f32 v{44+e}, v{44+e}, 0')
    for e in range(9):
        a(f'v_subrev_u32 v{44+e}, 17024, v{44+e}')
        a(f'v_cmp_gt_i32 vcc, 128, v{30+e}')
        a(f'v_cndmask_b32 v{30+e}, v{44+e}, v{30+e}, vcc')
    a(f'''v_mov_b32 v44, 641
    v_cmp_gt_i32 vcc, 0, v38
    v_cndmask_b32 v38, v38, v44, vcc''')
    for e in range(9):
        a(f'v_lshl_add_u32 v{30+e}, v{30+e}, 1, s42')
    a(f'''v_and_b32 v44, 15, v0
    s_and_b32 s43, s4, 1
    s_lshl_b32 s43, s43, 4
    v_add_u32 v44, s43, v44               ; j
    v_bfe_u32 v45, v0, 4, 2               ; kg
    s_bitcmp1_b32 s4, 1
    s_cbranch_scc1 C_kd_xt1
    v_lshlrev_b32 v46, 3, v44
    v_lshl_add_u32 v46, v45, 2, v46
    v_lshlrev_b32 v47, 2, v44
    v_add_u32 v47, 256, v47               ; kg==2
    v_lshlrev_b32 v48, 1, v44
    v_add_u32 v48, 384, v48               ; kg==3
    v_cmp_eq_u32 vcc, 2, v45
    v_cndmask_b32 v46, v46, v47, vcc
    v_cmp_eq_u32 vcc, 3, v45
    v_cndmask_b32 v40, v46, v48, vcc
    v_add_u32 v41, 1, v40
    v_add_u32 v46, 2, v40
    v_add_u32 v47, 64, v40
    v_cndmask_b32 v42, v46, v47, vcc
    v_add_u32 v43, 1, v42
    s_branch C_kd_done
    C_kd_xt1:
    v_add_u32 v46, 512, v44
    v_mov_b32 v47, 700                    ; dump
    v_mov_b32 v48, 640
    v_lshl_add_u32 v49, v45, 5, v44
    v_cmp_eq_u32 vcc, 32, v49
    v_cndmask_b32 v48, v47, v48, vcc
    v_cmp_eq_u32 vcc, 0, v45
    v_cndmask_b32 v40, v48, v46, vcc
    v_add_u32 v46, 32, v46
    v_cndmask_b32 v41, v47, v46, vcc
    v_add_u32 v46, 32, v46
    v_cndmask_b32 v42, v47, v46, vcc
    v_add_u32 v46, 32, v46
    v_cndmask_b32 v43, v47, v46, vcc
    C_kd_done:''')
    for r in range(4): a(f'v_lshl_add_u32 v{40+r}, v{40+r}, 1, s42')
    a(f'''v_and_b32 v44, 15, v0
    v_mul_u32_u24 v44, {PITCH}, v44
    v_lshl_add_u32 v44, v45, 4, v44
    s_bfe_u32 s44, s4, 0x10001            ; xt
    s_mul_i32 s44, s44, {16*PITCH}
    s_add_u32 s44, s44, s39
    s_and_b32 s45, s4, 1
    s_mul_i32 s45, s45, {16*PITCH}
    s_add_u32 s45, s45, s39
    s_add_u32 s45, s45, {21*PITCH}
    v_add_u32 v45, s45, v44               ; B (Y) addr
    v_add_u32 v44, s44, v44               ; A (X) addr
    s_waitcnt lgkmcnt(0)
    s_cmp_eq_u32 s38, 0
    s_cselect_b32 s46, 16, 0
    s_lshl_b32 s28, s28, s46
    s_and_b32 s28, s28, 0xffff0000
    v_mov_b32 v46, {LOG2E}
    v_mul_f32 v47, s28, v46
    v_exp_f32 v47, v47
    v_mov_b32 v48, {f2u(0.15915494309189535)}
    v_cvt_pk_bf16_f32 v47, 0, v47         ; dt''')
    a.reset_counters(); a.vm_list = ['par'] * 6 + ['xt', 'st', 'st']
    a.wait(vm='par')
    st(1)
    for i in range(6): a(f'v_lshlrev_b32 v{10+i}, 16, v{10+i}')
    a('''v_mul_f32 v10, v47, v10
    v_mul_f32 v11, v47, v11
    v_mul_f32 v12, v47, v12
    v_mul_f32 v13, v47, v13
    v_mul_f32 v10, v46, v10               ; lr
    v_mul_f32 v11, v48, v11               ; th
    v_mul_f32 v50, v14, v12
    v_mul_f32 v51, v14, v13
    v_fma_f32 v50, -v15, v13, v50
    v_fmac_f32 v51, v15, v12''')
    a(f'''v_mul_f32 v64, 0x41000000, v10
    v_mul_f32 v65, 0x43800000, v10
    v_mul_f32 v66, 0x41000000, v11
    v_mul_f32 v67, 0x43800000, v11
    v_exp_f32 v10, v10
    v_exp_f32 v64, v64
    v_exp_f32 v65, v65
    v_fract_f32 v11, v11
    v_fract_f32 v66, v66
    v_fract_f32 v67, v67
    v_cos_f32 v52, v11
    v_sin_f32 v53, v11
    v_cos_f32 v56, v66
    v_sin_f32 v59, v66
    v_cos_f32 v60, v67
    v_sin_f32 v61, v67
    v_mul_f32 v52, v10, v52
    v_mul_f32 v53, v10, v53
    v_mul_f32 v56, v64, v56
    v_mul_f32 v59, v64, v59
    v_mul_f32 v60, v65, v60
    v_mul_f32 v61, v65, v61
    v_sub_f32 v55, 0, v53
    v_sub_f32 v57, 0, v59
    v_sub_f32 v63, 0, v61''')
    tmp = [0]
    def emit(row, r):
        t = 100 + (tmp[0] % 8); tmp[0] += 1
        a(f'v_cvt_pk_bf16_f32 v{t}, v{r}, v{r+1}')
        a.ds(f'ds_write_b32 v7, v{t} offset:{row*PITCH}')
    def cmul_ops(d, x, m):
        return [f'v_mul_f32 v{d}, v{x}, v{m}', f'v_mul_f32 v{d+1}, v{x}, v{m+1}',
                f'v_fmac_f32 v{d}, v{x+1}, v{m+3}', f'v_fmac_f32 v{d+1}, v{x+1}, v{m}']
    def inter(*lists):
        n = max(len(l) for l in lists)
        for i in range(n):
            for l in lists:
                if i < len(l): a(l[i])
    inter(cmul_ops(68, 56, 56))
    a('v_sub_f32 v71, 0, v69\nv_mov_b32 v98, 0x3f80')
    a.ds(f'ds_write_b32 v7, v98 offset:{21*PITCH}')
    emit(0, 50); emit(21 + 1, 56); emit(21 + 2, 68)
    xreg = {0: 50, 1: 72, 2: 74, 3: 76, 4: 78, 5: 80, 6: 82, 7: 84}
    jobsC = []
    for i in range(1, 8): jobsC.append((xreg[i], xreg[i-1], 52, i))
    pp = [86, 88]
    prev = 50
    for k, row in enumerate((8, 12, 14, 16, 17, 18, 19, 20)):
        d = pp[k % 2]; jobsC.append((d, prev, 60, row)); prev = d
    prev = 78
    for k, row in enumerate((10, 13, 15)):
        d = [72, 76][k % 2]; jobsC.append((d, prev, 60, row)); prev = d
    jobsC.append((80, 74, 60, 9)); jobsC.append((84, 82, 60, 11))
    ya, yb = 56, 68
    ra, rb_ = [90, 92], [94, 96]
    step = 0
    jc = 0
    j = 3
    while j <= 31 or jc < len(jobsC):
        ls = []; em = []
        if j <= 31:
            d = ra[step % 2]; ls.append(cmul_ops(d, ya, 68)); ya = d; em.append((21 + j, d))
            if j + 1 <= 31:
                d = rb_[step % 2]; ls.append(cmul_ops(d, yb, 68)); yb = d; em.append((21 + j + 1, d))
            j += 2
        n_c = 1 if j <= 25 else 2
        for _ in range(n_c if j <= 33 else 2):
            if jc < len(jobsC):
                d, x, m, row = jobsC[jc]
                if any(d2 == x for _, d2 in em): break
                ls.append(cmul_ops(d, x, m)); em.append((row, d)); jc += 1
        inter(*ls)
        for row, d in em: emit(row, d)
        step += 1
    a.wait(ds='all')
    st(2)
    a('s_barrier')
    for s in range(16):
        a.ds(f'ds_read_b128 v[{64+8*s}:{67+8*s}], v44 offset:{64*s}', f'ka{s}')
        a.ds(f'ds_read_b128 v[{68+8*s}:{71+8*s}], v45 offset:{64*s}', f'kb{s}')
        if s == 6:
            pass
    a(f'''v_mov_b32 v46, s32
    v_mov_b32 v47, s33
    v_mov_b32 v48, s34
    v_mov_b32 v49, s35
    v_and_b32 v50, 2, v0
    v_cmp_eq_u32 vcc, 0, v50
    v_lshlrev_b32 v51, 4, v4              ; t0*2 bytes
    v_cndmask_b32 v46, v47, v46, vcc      ; sa
    v_cndmask_b32 v48, v49, v48, vcc      ; ca
    v_mul_u32_u24 v52, {U_SZ // 2}, v50
    v_add3_u32 v52, v52, v51, 0
    v_lshl_add_u32 v53, v50, 11, v51
    v_add_f32 v48, 1.0, v48
    v_add_u32 v52, {U0 + 480}, v52
    v_add_u32 v53, {X0}, v53
    v_cvt_pk_bf16_f32 v48, 0, v48''')
    a.wait(vm='st')
    for i in range(8):
        a(f'v_and_b32 v{54+i}, 0xffff0000, v{20+i}')
        a(f'v_lshlrev_b32 v{20+i}, 16, v{20+i}')
    for i in range(8): a(f'v_rcp_f32 v{54+i}, v{54+i}')
    for i in range(4):
        a(f'v_lshlrev_b32 v{10+2*(i%2)}, 16, v{16+i}')
        a(f'v_and_b32 v{11+2*(i%2)}, 0xffff0000, v{16+i}')
        a(f'v_sub_f32 v{20+2*i}, v{10+2*(i%2)}, v{20+2*i}')
        a(f'v_sub_f32 v{21+2*i}, v{11+2*(i%2)}, v{21+2*i}')
    for i in range(8): a(f'v_mul_f32 v{20+i}, v{20+i}, v{54+i}')
    for i in range(8): a(f'v_fma_f32 v{20+i}, v{20+i}, v48, v46')
    for i in range(4): a(f'v_cvt_pk_bf16_f32 v{54+i}, v{20+2*i}, v{21+2*i}')
    for s in range(16):
        a.wait(ds=f'kb{s}')
        a(f'v_mfma_f32_16x16x32_bf16 v[12:15], v[{64+8*s}:{67+8*s}], v[{68+8*s}:{71+8*s}], ' + ('0' if s == 0 else 'v[12:15]'))
    a.ds('ds_write_b128 v52, v[54:57]')
    a.ds('ds_write_b128 v53, v[16:19]')
    a('v_cvt_pk_bf16_f32 v12, v12, v13\nv_cvt_pk_bf16_f32 v14, v14, v15')
    a.ds('ds_write_b16 v40, v12'); a.ds('ds_write_b16_d16_hi v41, v12')
    a.ds('ds_write_b16 v42, v14'); a.ds('ds_write_b16_d16_hi v43, v14')
    a.wait(ds='all')
    a('s_barrier')
    st(3)
    for e in range(9):
        a.ds(f'ds_read_u16 v{50+e}, v{30+e}')
    a(f'''s_mul_i32 s42, s38, {KR_SZ}
    s_add_u32 s42, s42, {KR0}
    v_lshl_add_u32 v28, v6, 4, s42''')
    a(f'''s_bfe_u32 s47, s4, 0x10001
    s_and_b32 s48, s4, 1                  ; half
    v_and_b32 v30, 15, v0                 ; i / j
    v_bfe_u32 v31, v0, 4, 2               ; kg
    s_mul_i32 s49, s47, {U_SZ}
    s_lshl_b32 s50, s48, 8
    s_add_u32 s49, s49, s50
    s_add_u32 s49, s49, {U0}
    v_lshlrev_b32 v32, 5, v30
    v_lshl_add_u32 v32, v31, 4, v32
    v_add_u32 v32, s49, v32               ; F addr
    v_lshlrev_b32 v33, 3, v31
    v_sub_u32 v33, v33, v30
    v_add_u32 v33, 1807, v33
    v_and_b32 v34, 1, v33                 ; 1 -> copy B
    v_and_b32 v33, -2, v33
    v_lshlrev_b32 v33, 1, v33
    v_mul_u32_u24 v34, {KR_B}, v34
    s_mul_i32 s49, s47, {KR_SZ}
    s_add_u32 s49, s49, s50
    s_add_u32 s49, s49, {KR0 - 512}
    v_add3_u32 v33, v33, v34, s49
    v_subrev_u32 v34, 1024, v33
    v_subrev_u32 v35, 2048, v33
    v_subrev_u32 v36, 3072, v33''')
    a.wait(ds='all')
    for q in range(4): a(f'v_lshl_or_b32 v{20+q}, v{51+2*q}, 16, v{50+2*q}')
    for q in range(4): a(f'v_lshl_or_b32 v{40+q}, v{52+2*q}, 16, v{51+2*q}')
    a.ds('ds_write_b128 v28, v[20:23]')
    a.ds(f'ds_write_b128 v28, v[40:43] offset:{KR_B}')
    if dbgK:
        a(f'v_add_u32 v3, 0x2000000, v3\nglobal_store_dwordx4 v3, v[20:23], s[8:9]')
    a.wait(ds='all')
    a('s_barrier')
    st(4)
    a('s_cmp_ge_u32 s4, 4\ns_cbranch_scc1 C_helper')
    F = lambda b, m: 64 + 64 * b + 4 * m
    A = lambda b, n: 96 + 64 * b + 4 * n
    ACC = lambda c: 192 + 4 * c
    def reads(s):
        b = s & 1; L = []
        for q in range(8):
            L.append((f'ds_read_b128 v[{F(b,q)}:{F(b,q)+3}], v32 offset:{64*s + 512*q}', f'F{s}_{q}'))
            o = (64 * s + (512 if q % 2 == 0 else 0)) // 4
            L.append((f'ds_read2_b32 v[{A(b,q)}:{A(b,q)+1}], v{33 + q//2} offset0:{o} offset1:{o+1}', f'A{s}_{q}'))
            L.append((f'ds_read2_b32 v[{A(b,q)+2}:{A(b,q)+3}], v{33 + q//2} offset0:{o+2} offset1:{o+3}', f'A{s}_{q}'))
        return L
    for t, g in reads(0): a.ds(t, g)
    for s in range(4):
        b = s & 1
        nxt = reads(s + 1) if s < 3 else []
        pairs = sorted([(n, m) for n in range(8) for m in range(8 - n)], key=lambda p: (max(p), p))
        seen = set()
        for k, (n, m) in enumerate(pairs):
            a.wait(ds=[f'A{s}_{n}', f'F{s}_{m}'])
            c = n + m
            first = (s == 0 and c not in seen); seen.add(c)
            a(f'v_mfma_f32_16x16x32_bf16 v[{ACC(c)}:{ACC(c)+3}], v[{A(b,n)}:{A(b,n)+3}], v[{F(b,m)}:{F(b,m)+3}], ' + ('0' if first else f'v[{ACC(c)}:{ACC(c)+3}]'))
            if k >= 6 and nxt:
                t, g = nxt.pop(0); a.ds(t, g)
        assert not nxt
    st(5)
    a(f'''v_and_b32 v37, 63, v0
    v_lshlrev_b32 v37, 4, v37
    s_lshl_b32 s49, s4, 12
    v_add_u32 v38, s49, v37
    s_xor_b32 s49, s49, 4096
    v_add_u32 v37, s49, v37
    v_lshlrev_b32 v39, 5, v30
    v_lshl_add_u32 v39, v31, 3, v39
    s_lshl_b32 s50, s48, 11
    v_add_u32 v39, s50, v39               ; t0*2
    s_mul_i32 s51, s47, {U_SZ}
    s_add_u32 s51, s51, {U0 + 480}
    v_add_u32 v40, s51, v39
    s_lshl_b32 s51, s47, 12
    s_add_u32 s52, s51, {X0}
    v_add_u32 v41, s52, v39
    s_lshl_b32 s52, s2, 13
    s_add_u32 s51, s51, s52
    s_add_u32 s51, s51, {X2T}
    v_add_u32 v42, s51, v39
    s_cmp_eq_u32 s47, 0
    s_cselect_b32 s46, 16, 0
    s_cselect_b32 s36, s36, s37           ; ga
    s_lshl_b32 s29, s29, s46
    s_and_b32 s29, s29, 0xffff0000        ; Dskip
    s_cmp_eq_u32 s48, 0
    s_cbranch_scc1 C_h0''')
    for q in range(4): a(f'ds_write_b128 v38, v[{ACC(q)}:{ACC(q)+3}] offset:{1024*q}')
    for q in range(16): a(f'v_mov_b32 v{ACC(0)+q}, v{ACC(4)+q}')
    a('s_branch C_h1\nC_h0:')
    for q in range(4): a(f'ds_write_b128 v38, v[{ACC(4+q)}:{ACC(4+q)+3}] offset:{1024*q}')
    a.label('C_h1')
    for q in range(4):
        a(f'ds_read_b64 v[{64+2*q}:{65+2*q}], v40 offset:{512*q}')
        a(f'ds_read_b64 v[{72+2*q}:{73+2*q}], v41 offset:{512*q}')
    a('s_waitcnt lgkmcnt(0)\ns_barrier')
    a.reset_counters()
    for q in range(4): a.ds(f'ds_read_b128 v[{80+4*q}:{83+4*q}], v37 offset:{1024*q}', f'p{q}')
    for q in range(4):
        for k in range(2):
            a(f'v_lshlrev_b32 v{100+2*k}, 16, v{64+2*q+k}')
            a(f'v_and_b32 v{101+2*k}, 0xffff0000, v{64+2*q+k}')
            a(f'v_lshlrev_b32 v{104+2*k}, 16, v{72+2*q+k}')
            a(f'v_and_b32 v{105+2*k}, 0xffff0000, v{72+2*q+k}')
        a.wait(ds=f'p{q}')
        for r in range(4): a(f'v_add_f32 v{ACC(q)+r}, v{ACC(q)+r}, v{80+4*q+r}')
        for r in range(4): a(f'v_fmac_f32 v{ACC(q)+r}, s29, v{100+r}')
        for r in range(4): a(f'v_fmac_f32 v{104+r}, s36, v{ACC(q)+r}')
        a(f'v_cvt_pk_bf16_f32 v{108+2*q}, v104, v105\nv_cvt_pk_bf16_f32 v{109+2*q}, v106, v107')
        a(f'global_store_dwordx2 v42, v[{108+2*q}:{109+2*q}], s[8:9] offset:{512*q}')
    st(6)
    if ts and 'w4' not in OPT: stamp_store(a, 1, 7, 'C_ts0')
    a('s_endpgm')
    a.label('C_helper')
    if 'nowpf' not in OPT:
        a(f'''s_lshr_b32 s53, s2, 3
        s_mul_i32 s53, s53, 57344
        v_lshlrev_b32 v200, 6, v6
        s_add_u32 s54, s53, {W1F}
        s_add_u32 s55, s53, {W2F}
        s_mov_b32 s56, s8
        s_mov_b32 s57, s9
        s_mov_b32 s58, 0x10000000
        s_mov_b32 s59, 0x20000''')
        for k, inc in enumerate((16384, 16384, 8192, 0)):
            a(f'buffer_load_dword v{201+2*k}, v200, s[56:59], s54 offen\nbuffer_load_dword v{202+2*k}, v200, s[56:59], s55 offen')
            if inc: a(f's_add_u32 s54, s54, {inc}\ns_add_u32 s55, s55, {inc}')
    a('s_barrier')
    if ts and 'w4' in OPT:
        a('v_xor_b32 v0, 256, v0')
        stamp_store(a, 1, 5, 'C_ts1')
    a.label('C_end')
    a('s_endpgm')
    return a.text(), kernel_desc('conv_kernel', 224, 102 if ts else 64, 224)
```

```python
from asmlib import *
from layout import *
from k_prep import stamp_store, stamp_store_w
import struct
f2u = lambda f: struct.unpack('<I', struct.pack('<f', f))[0]

GRID = 256
PITCH = 1024
XY_SZ = 53 * PITCH
KD0 = 2 * XY_SZ + 16
KD_SZ = 1536
KR0 = 2 * XY_SZ + 2 * KD_SZ
KR_B = 4160
KR_SZ = 8320
U0 = KR0 + 2 * KR_SZ
U_SZ = 4576
X0 = U0 + 2 * U_SZ
X_SZ = 4096
LDS = X0 + 2 * X_SZ
TILE = KR0
def optint(name, dflt):
    for o in OPT:
        if o.startswith(name + '='): return int(o.split('=')[1])
    return dflt
PUB = optint('pub', 3); MODJ = optint('modj', 4); POLLG = optint('pollg', 12)
RST = ' sc1' if 'rsc1' in OPT else (' nt' if 'rnt' in OPT else '')

def gen_front(ts=False):
    a = Asm()
    a.raw(kernel_header('front_kernel'))
    _st = (lambda i: a(f'{TSOP} s[{80+2*i}:{81+2*i}]')) if ts else (lambda i: None)
    st = _st
    st(0)
    a(f'''s_getpc_b64 s[20:21]
    F_pc:
    s_load_dwordx4 s[76:79], s[0:1], {KA['dbg']}
    v_lshlrev_b32 v238, 6, v0
    v_min_u32 v238, code_end - F_pc - 4, v238
    s_cmp_ge_u32 s2, {GRID}
    s_cbranch_scc1 F_end
    global_load_dword v239, v238, s[20:21]
    v_lshrrev_b32 v1, 6, v0
    s_cmp_ge_u32 s2, 224
    v_readfirstlane_b32 s4, v1            ; wave
    s_cbranch_scc1 F_relay
    s_load_dwordx2 s[60:61], s[0:1], {KA['u']}
    s_load_dwordx4 s[12:15], s[0:1], {KA['Are']}
    s_load_dwordx8 s[16:23], s[0:1], {KA['Bre']}
    s_load_dwordx4 s[24:27], s[0:1], {KA['logdt']}
    s_load_dwordx4 s[64:67], s[0:1], {KA['c']}     ; c, wmod
    s_lshl_b32 s3, s2, 10
    v_lshl_add_u32 v2, v0, 1, s3
    s_lshl_b32 s6, s2, 2
    v_and_b32 v3, 63, v0                  ; lane
    s_mov_b32 s63, 0x20000
    s_mov_b32 s71, 0x20000
    s_mov_b32 s75, 0x20000
    s_cmp_ge_u32 s2, 128
    s_cbranch_scc1 F_ld_mod
    s_mul_i32 s7, s2, {16*896}
    s_mul_i32 s10, s4, {2*896}
    s_add_u32 s7, s7, s10
    v_lshlrev_b32 v4, 4, v3
    v_mov_b32 v5, 0x40000000
    v_cmp_gt_u32 s[10:11], 56, v3
    s_mov_b32 s62, {2048*896}
    v_cndmask_b32 v4, v5, v4, s[10:11]
    s_or_b32 s34, s2, s4
    s_memrealtime s[36:37]
    s_waitcnt lgkmcnt(0)
    buffer_load_dwordx4 v[112:115], v4, s[60:63], s7 offen
    buffer_load_dwordx4 v[116:119], v4, s[60:63], s7 offen offset:896
    s_cmp_lg_u32 s34, 0
    s_cbranch_scc1 F_ld_par
    s_or_b32 s36, s36, 1
    v_mov_b32 v8, 0
    v_mov_b32 v9, s36
    s_mov_b64 exec, 1
    global_store_dword v8, v9, s[76:77] sc1
    s_mov_b64 exec, -1
    s_waitcnt vmcnt(1)
    s_branch F_ld_par
    F_ld_mod:
    v_and_b32 v5, 3, v0
    v_lshrrev_b32 v8, 2, v0
    v_mul_u32_u24 v4, 5376, v8
    v_lshl_add_u32 v4, v5, 4, v4
    s_movk_i32 s34, 0x60
    v_cmp_gt_u32 s[10:11], s34, v8
    v_lshlrev_b32 v8, 1, v8
    v_mov_b32 v9, 0x40000000
    v_add_u32 v132, {128*5376}, v4
    v_add_u32 v133, 256, v8
    v_cndmask_b32 v132, v9, v132, s[10:11]
    v_cndmask_b32 v133, v9, v133, s[10:11]
    s_sub_u32 s7, s2, 128
    s_and_b32 s34, s7, 1
    s_lshr_b32 s7, s7, 1
    s_lshl_b32 s7, s7, 6
    s_mul_i32 s35, s34, {224*5376}
    s_add_u32 s7, s7, s35
    s_mul_i32 s35, s34, 448
    s_mov_b32 s70, 896
    s_mov_b32 s74, {448*5376}
    s_cmp_ge_u32 s2, 212
    s_cselect_b32 s74, 0, s74
    s_waitcnt lgkmcnt(0)
    s_mov_b32 s68, s64
    s_mov_b32 s69, s65
    s_mov_b32 s72, s66
    s_mov_b32 s73, s67
    buffer_load_dwordx4 v[112:115], v4, s[72:75], s7 offen
    buffer_load_dwordx4 v[116:119], v132, s[72:75], s7 offen
    buffer_load_ushort v128, v8, s[68:71], s35 offen
    buffer_load_ushort v129, v133, s[68:71], s35 offen''')
    def par_loads():
        for i, b in enumerate((12, 14, 16, 18, 20, 22)):
            a(f'global_load_ushort v{10+i}, v2, s[{b}:{b+1}]')
    a.label('F_ld_par')
    par_loads()
    a(f'''s_load_dword s28, s[24:25], s6
    s_load_dword s29, s[26:27], s6
    s_mov_b32 s8, s78
    s_mov_b32 s9, s79
    s_lshr_b32 s38, s4, 2
    v_and_b32 v6, 255, v0                 ; n / c
    s_mul_i32 s39, s38, {XY_SZ}
    v_lshlrev_b32 v7, 2, v6
    v_add_u32 v160, s39, v7''')
    for k in range(1, 8): a(f'v_xor_b32 v{160+k}, {k << 5}, v7\nv_add_u32 v{160+k}, s39, v{160+k}')
    a(f'''v_mov_b32 v8, 0
    v_mov_b32 v9, 0
    s_lshl_b32 s10, s2, 6
    s_add_u32 s10, s10, {STG}
    v_mov_b32 v150, s10
    v_mov_b32 v151, 0
    v_mov_b32 v153, 0
    v_cmp_gt_u32 vcc, 60, v6
    s_and_saveexec_b64 s[40:41], vcc
    s_mul_i32 s42, s38, {U_SZ}
    s_add_u32 s42, s42, {U0}
    v_lshl_add_u32 v28, v6, 3, s42
    ds_write_b64 v28, v[8:9]
    s_mul_i32 s42, s38, {KD_SZ}
    s_add_u32 s42, s42, {KD0 - 8}
    v_mov_b32 v28, s42
    ds_write_b64 v28, v[8:9]
    s_mov_b64 exec, s[40:41]
    s_add_u32 s42, s42, 8
    v_lshlrev_b32 v28, 3, v6
    v_sub_u32 v28, 2047, v28
    v_cvt_f32_i32 v44, v28
    s_sub_u32 s43, s42, {2*17024}''')
    for e in range(1, 9): a(f'v_subrev_f32 v{44+e}, {hex(f2u(float(e)))}, v44')
    for e in range(0, 9, 2): a(f'v_cvt_pk_bf16_f32 v{44+e}, v{44+e}, v{min(45+e, 52)}')
    for e in range(9): a(f'v_mad_u32_u16 v{30+e}, v{44+(e&~1)}, 2, s43' + (' op_sel:[1,0,0,0]' if e & 1 else ''))
    a(f'''s_and_b32 s44, s4, 3
    s_cmp_lg_u32 s44, 3
    s_cbranch_scc1 F_nolin
    s_mov_b32 exec_lo, 0
    v_lshl_add_u32 v30, v28, 1, s42''')
    for e in range(1, 9): a(f'v_subrev_u32 v{30+e}, {2*e}, v30')
    a(f'''s_mov_b64 exec, -1
    F_nolin:
    v_and_b32 v44, 15, v0
    s_and_b32 s43, s4, 1
    s_lshl_b32 s43, s43, 4
    v_add_u32 v46, s43, v44               ; j
    v_bfe_u32 v45, v0, 4, 2               ; kg
    s_bitcmp1_b32 s4, 1
    s_cbranch_scc1 F_kd_xt1
    v_cmp_eq_u32 s[44:45], 2, v45
    v_cmp_eq_u32 s[46:47], 3, v45
    v_lshlrev_b32 v40, 3, v46
    v_lshl_add_u32 v40, v45, 2, v40
    v_lshlrev_b32 v47, 2, v46
    v_add_u32 v47, 256, v47               ; kg==2
    v_lshlrev_b32 v48, 1, v46
    v_add_u32 v48, 384, v48               ; kg==3
    v_cndmask_b32 v40, v40, v47, s[44:45]
    v_cndmask_b32 v40, v40, v48, s[46:47]
    v_lshl_add_u32 v40, v40, 1, s42
    v_add_u32 v46, 4, v40
    v_add_u32 v47, 128, v40
    v_add_u32 v41, 2, v40
    v_cndmask_b32 v42, v46, v47, s[46:47]
    v_add_u32 v43, 2, v42
    s_branch F_kd_done
    F_kd_xt1:
    v_lshl_add_u32 v49, v45, 5, v46
    v_cmp_eq_u32 s[46:47], 0, v45
    v_cmp_eq_u32 s[44:45], 32, v49
    s_add_u32 s43, s42, 1024
    v_lshl_add_u32 v46, v46, 1, s43
    s_add_u32 s43, s42, 1400
    v_mov_b32 v47, s43                    ; dump
    s_add_u32 s43, s42, 1280
    v_mov_b32 v48, s43
    v_cndmask_b32 v48, v47, v48, s[44:45]
    v_cndmask_b32 v40, v48, v46, s[46:47]
    v_add_u32 v46, 64, v46
    v_cndmask_b32 v41, v47, v46, s[46:47]
    v_add_u32 v46, 64, v46
    v_cndmask_b32 v42, v47, v46, s[46:47]
    v_add_u32 v46, 64, v46
    v_cndmask_b32 v43, v47, v46, s[46:47]
    F_kd_done:
    s_bfe_u32 s44, s4, 0x10001            ; xt
    s_lshl_b32 s44, s44, 14
    s_add_u32 s44, s44, s39
    v_lshl_add_u32 v46, v44, 10, s44
    v_and_b32 v47, 7, v44
    v_lshlrev_b32 v47, 1, v47
    v_xor_b32 v47, v47, v45
    v_lshl_add_u32 v216, v47, 4, v46
    s_and_b32 s45, s4, 1
    s_lshl_b32 s45, s45, 4
    s_add_u32 s45, s45, 21
    v_add_u32 v46, s45, v44               ; Y row
    v_and_b32 v47, 7, v46
    v_lshl_add_u32 v46, v46, 10, s39
    v_lshlrev_b32 v47, 1, v47
    v_xor_b32 v47, v47, v45
    v_lshl_add_u32 v220, v47, 4, v46''')
    for k in range(1, 4): a(f'v_xor_b32 v{216+k}, {64*k}, v216\nv_xor_b32 v{220+k}, {64*k}, v220')
    a(f'''s_waitcnt lgkmcnt(0)
    s_cmp_eq_u32 s38, 0
    s_cselect_b32 s46, 16, 0
    s_lshl_b32 s28, s28, s46
    s_and_b32 s28, s28, 0xffff0000
    v_mov_b32 v46, {LOG2E}
    v_mul_f32 v47, s28, v46
    v_exp_f32 v47, v47
    v_mov_b32 v48, {f2u(0.15915494309189535)}
    v_cvt_pk_bf16_f32 v47, 0, v47         ; dt
    s_cmp_ge_u32 s2, 128
    s_cbranch_scc1 F_kgen_w''')
    a(f'''s_mul_i32 s10, s4, {2*960}
    s_add_u32 s10, s10, {TILE}
    v_lshl_add_u32 v50, v3, 4, s10
    v_bfe_u32 v51, v0, 2, 2               ; r4
    v_bfe_u32 v52, v0, 5, 1               ; oct
    v_lshl_add_u32 v51, v52, 3, v51
    v_mul_u32_u24 v51, 960, v51
    v_and_b32 v53, 3, v0
    v_lshl_add_u32 v51, v53, 3, v51
    v_bfe_u32 v53, v0, 4, 1               ; dblk
    v_lshl_add_u32 v51, v53, 5, v51
    s_lshl_b32 s10, s4, 6
    s_add_u32 s10, s10, {TILE}
    v_add_u32 v51, s10, v51
    v_bfe_u32 v54, v0, 1, 3
    v_lshl_add_u32 v54, v53, 3, v54
    v_lshlrev_b32 v54, 13, v54
    v_and_b32 v53, 1, v0
    v_lshl_add_u32 v54, v53, 5, v54
    v_lshl_add_u32 v54, v52, 4, v54
    s_lshl_b32 s10, s4, 17
    s_lshl_b32 s11, s2, 6
    s_add_u32 s10, s10, s11
    v_add_u32 v54, s10, v54
    s_lshl_b32 s10, s2, 6
    s_lshl_b32 s11, s4, 3
    s_add_u32 s10, s10, s11
    s_add_u32 s10, s10, {ST}
    v_lshl_add_u32 v152, v52, 2, s10
    s_mov_b32 s10, 0x3f803f80
    v_mov_b32 v120, 0
    v_mov_b32 v121, 0
    v_mov_b32 v122, 0
    v_mov_b32 v123, 0
    s_mov_b32 s48, -1
    s_mov_b32 s49, 0x00ffffff
    s_waitcnt vmcnt(6)
    s_mov_b64 exec, s[48:49]
    ds_write_b128 v50, v[112:115]
    ds_write_b128 v50, v[116:119] offset:960
    s_mov_b64 exec, -1''')
    for j in range(4):
        a(f'v_dot2c_f32_bf16 v120, s10, v{112+j}\nv_dot2c_f32_bf16 v121, s10, v{116+j}')
        a(f'v_dot2c_f32_bf16 v122, v{112+j}, v{112+j}\nv_dot2c_f32_bf16 v123, v{116+j}, v{116+j}')
        if j == 0: a('s_waitcnt lgkmcnt(0)\ns_barrier\n' + f'''ds_read_b64_tr_b16 v[124:125], v51
        ds_read_b64_tr_b16 v[126:127], v51 offset:{4*960}
        ds_read_b64_tr_b16 v[128:129], v51 offset:512
        ds_read_b64_tr_b16 v[130:131], v51 offset:{512 + 4*960}''')
    a(f'''s_waitcnt vmcnt(0) lgkmcnt(2)
    global_store_dwordx4 v54, v[124:127], s[8:9] sc1
    v_add_u32 v54, {8*131072}, v54
    s_cmp_ge_u32 s4, 6
    s_cbranch_scc1 F_st_skip
    s_waitcnt lgkmcnt(0)
    global_store_dwordx4 v54, v[128:131], s[8:9] sc1
    F_st_skip:
    v_permlane32_swap_b32 v120, v121
    v_permlane32_swap_b32 v122, v123
    v_add_f32 v120, v120, v121
    v_add_f32 v122, v122, v123
    v_mov_b32 v121, v120
    v_mov_b32 v123, v122
    v_permlane16_swap_b32 v120, v121
    v_permlane16_swap_b32 v122, v123
    v_add_f32 v120, v120, v121
    v_add_f32 v122, v122, v123''')
    for sh in (8, 4, 2, 1):
        a(f'v_add_f32_dpp v120, v120, v120 row_ror:{sh} row_mask:0xf bank_mask:0xf')
        a(f'v_add_f32_dpp v122, v122, v122 row_ror:{sh} row_mask:0xf bank_mask:0xf')
    a(f'''v_mul_f32 v120, {f2u(1/448)}, v120
    v_mul_f32 v122, {f2u(1/448)}, v122
    v_fma_f32 v122, -v120, v120, v122
    v_max_f32 v122, 0, v122
    v_cvt_pk_bf16_f32 v122, 0, v122
    v_add_f32 v122, {f2u(1e-5)}, v122
    v_cvt_pk_bf16_f32 v122, 0, v122
    v_sqrt_f32 v122, v122
    s_waitcnt lgkmcnt(0)
    v_cvt_pk_bf16_f32 v122, v120, v122
    s_mov_b32 exec_lo, 1
    s_mov_b32 exec_hi, 1
    global_store_dword v152, v122, s[8:9] sc1
    s_mov_b64 exec, -1
    s_branch F_kgen
    F_kgen_w:''')
    def mod_reduce(nrow, creg, tmp, wreg, waits, lds_addr_code):
        for q in range(8): a(f'v_mov_b32 v{140+q}, 0')
        a(lds_addr_code)
        a(f's_mov_b32 s10, {0x80000000 | LOG2E}\n{waits[0]}')
        R = range(nrow)
        for i in R: a(f'v_lshlrev_b32 v{creg+i}, 16, v{creg+i}')
        for i in R: a(f'v_mul_f32 v{tmp+i}, s10, v{creg+i}')
        for i in R: a(f'v_exp_f32 v{tmp+i}, v{tmp+i}')
        for i in R: a(f'v_add_f32 v{tmp+i}, 1.0, v{tmp+i}')
        for i in R: a(f'v_rcp_f32 v{tmp+i}, v{tmp+i}')
        for i in R: a(f'v_mul_f32 v{creg+i}, v{creg+i}, v{tmp+i}')
        for i in R: a(f'v_cvt_pk_bf16_f32 v{creg+i}, v{creg+i}, 0')
        for i in R: a(f'v_lshlrev_b32 v{tmp+i}, 16, v{creg+i}')
        for i in R:
            if waits[1+i]: a(waits[1+i])
            for q in range(4):
                a(f'v_dot2c_f32_bf16 v{140+2*q}, v{wreg+4*i+q}, v{creg+i}')
                a(f'v_dot2c_f32_bf16 v{141+2*q}, v{wreg+4*i+q}, v{tmp+i}')
        for i in range(4): a(f'v_permlane32_swap_b32 v{140+2*i}, v{141+2*i}')
        for i in range(4): a(f'v_add_f32 v{140+2*i}, v{140+2*i}, v{141+2*i}')
        a('v_permlane16_swap_b32 v140, v142\nv_permlane16_swap_b32 v144, v146')
        a('v_add_f32 v140, v140, v142\nv_add_f32 v144, v144, v146')
        for sh in (8, 4):
            a(f'v_add_f32_dpp v140, v140, v140 row_ror:{sh} row_mask:0xf bank_mask:0xf')
            a(f'v_add_f32_dpp v144, v144, v144 row_ror:{sh} row_mask:0xf bank_mask:0xf')
        a('ds_write_b32 v156, v140\nds_write_b32 v156, v144 offset:16')
    mod_reduce(2, 128, 132, 112, ['s_waitcnt vmcnt(6)', None, None], f'''s_lshl_b32 s10, s4, 7
        s_add_u32 s10, s10, {TILE}
        v_lshl_add_u32 v156, v5, 5, s10
        v_bfe_u32 v157, v0, 4, 1
        v_lshl_add_u32 v156, v157, 3, v156
        v_bfe_u32 v157, v0, 5, 1
        v_lshl_add_u32 v156, v157, 2, v156''')
    a('s_waitcnt vmcnt(0) lgkmcnt(0)\ns_barrier')
    a(f'''s_cmp_lg_u32 s4, 7
    s_cbranch_scc1 F_kgen
    s_cmp_ge_u32 s2, 212
    s_cbranch_scc1 F_kgen
    s_mov_b32 exec_hi, 0
    v_lshlrev_b32 v156, 2, v3
    v_add_u32 v157, {TILE}, v156
    ds_read2_b32 v[112:113], v157 offset0:0 offset1:32
    ds_read2_b32 v[114:115], v157 offset0:64 offset1:96
    ds_read2_b32 v[116:117], v157 offset0:128 offset1:160
    ds_read2_b32 v[118:119], v157 offset0:192 offset1:224
    s_sub_u32 s10, s2, 128
    s_lshr_b32 s11, s10, 1
    s_lshl_b32 s11, s11, 8
    s_lshl_b32 s10, s34, 2
    s_add_u32 s11, s11, s10
    s_add_u32 s48, s11, {MODG}
    v_lshl_add_u32 v159, v156, 1, s48
    s_waitcnt lgkmcnt(0)
    v_add_f32 v112, v112, v113
    v_add_f32 v114, v114, v115
    v_add_f32 v116, v116, v117
    v_add_f32 v118, v118, v119
    v_add_f32 v112, v112, v114
    v_add_f32 v116, v116, v118
    v_add_f32 v120, v112, v116
    global_store_dword v159, v120, s[8:9] sc1
    s_mov_b64 exec, -1
    F_kgen:''')
    def nonce_get(lab):
        a(f'''v_readfirstlane_b32 s33, v151
        s_mov_b32 s35, 0
        {lab}_l:
        s_cmp_lg_u32 s33, 0
        s_cbranch_scc1 {lab}_ok
        global_load_dword v151, v153, s[76:77] sc1
        s_add_u32 s35, s35, 1
        s_waitcnt vmcnt(0)
        v_readfirstlane_b32 s33, v151
        s_cmp_lt_u32 s35, 0x80000
        s_cbranch_scc1 {lab}_l
        {lab}_ok:''')
    a('''s_add_u32 s10, s4, 1
    s_and_b32 s10, s10, 6
    s_cbranch_scc1 F_nononce
    global_load_dword v151, v153, s[76:77] sc1
    F_nononce:''')
    a.reset_counters()
    st(1)
    for i in range(6): a(f'v_lshlrev_b32 v{10+i}, 16, v{10+i}')
    a('''v_mul_f32 v10, v47, v10
    v_mul_f32 v11, v47, v11
    v_mul_f32 v12, v47, v12
    v_mul_f32 v13, v47, v13
    v_mul_f32 v10, v46, v10               ; lr
    v_mul_f32 v11, v48, v11               ; th
    v_mul_f32 v50, v14, v12
    v_mul_f32 v51, v14, v13
    v_mul_f32 v64, 0x41000000, v10
    v_mul_f32 v65, 0x43800000, v10
    v_mul_f32 v66, 0x41000000, v11
    v_mul_f32 v67, 0x43800000, v11
    v_fract_f32 v11, v11
    v_fract_f32 v66, v66
    v_fract_f32 v67, v67
    v_exp_f32 v64, v64
    v_cos_f32 v56, v66
    v_sin_f32 v59, v66
    v_exp_f32 v10, v10
    v_cos_f32 v52, v11
    v_sin_f32 v53, v11
    v_exp_f32 v65, v65
    v_cos_f32 v60, v67
    v_sin_f32 v61, v67
    v_fma_f32 v50, -v15, v13, v50
    v_fmac_f32 v51, v15, v12
    v_mul_f32 v56, v64, v56
    v_mul_f32 v59, v64, v59
    v_mul_f32 v52, v10, v52
    v_mul_f32 v53, v10, v53
    v_sub_f32 v57, 0, v59
    v_mul_f32 v60, v65, v60
    v_mul_f32 v61, v65, v61
    v_sub_f32 v55, 0, v53
    v_sub_f32 v63, 0, v61
    v_mov_b32 v98, 0x3f80''')
    pool = list(range(100, 112)) + list(range(176, 192))
    held = {5: (21, 98)}
    def emit_ops(row, r):
        t = pool.pop(0)
        cv = f'v_cvt_pk_bf16_f32 v{t}, v{r}, v{r+1}'
        c = row & 7
        if c in held:
            r0, t0 = held.pop(c)
            if t0 != 98: pool.append(t0)
            pool.append(t)
            return [cv, f'ds_write2st64_b32 v{160+c}, v{t0}, v{t} offset0:{4*r0} offset1:{4*row}']
        held[c] = (row, t)
        return [cv, None]
    def cmul_ops(d, x, m):
        return [f'v_mul_f32 v{d}, v{x}, v{m}', f'v_mul_f32 v{d+1}, v{x}, v{m+1}',
                f'v_fmac_f32 v{d}, v{x+1}, v{m+3}', f'v_fmac_f32 v{d+1}, v{x+1}, v{m}']
    def group(ls, pend):
        seq = []
        n = max(len(l) for l in ls) if ls else 0
        for i in range(n):
            for l in ls:
                if i < len(l): seq.append(l[i])
        cv = [p[0] for p in pend]; wr = [p[1] for p in pend]
        out = []; pos = 0
        while pos < len(seq) or cv or wr:
            if cv: out.append(cv.pop(0))
            for _ in range(2):
                if pos < len(seq): out.append(seq[pos]); pos += 1
            if wr and len(cv) < len(wr):
                w = wr.pop(0)
                if w: out.append(w)
            if pos < len(seq): out.append(seq[pos]); pos += 1
        for o in out: a(o)
    xreg = {0: 50, 1: 72, 2: 74, 3: 76, 4: 78, 5: 80, 6: 82, 7: 84}
    group([cmul_ops(68, 56, 56), cmul_ops(72, 50, 52)], [emit_ops(0, 50), emit_ops(22, 56)])
    a('v_sub_f32 v71, 0, v69')
    pend = [emit_ops(23, 68), emit_ops(1, 72)]
    jobsC = []
    for i in range(2, 8): jobsC.append((xreg[i], xreg[i-1], 52, i))
    prev = 50
    for k, row in enumerate((8, 12, 14, 16, 17, 18, 19, 20)):
        d = [86, 88][k % 2]; jobsC.append((d, prev, 60, row)); prev = d
    jobsD = []
    prev = 78
    for k, row in enumerate((10, 13, 15)):
        d = [72, 76][k % 2]; jobsD.append((d, prev, 60, row)); prev = d
    jobsD.append((80, 74, 60, 9)); jobsD.append((84, 82, 60, 11))
    ya, yb = 56, 68
    ra, rb_ = [90, 92], [94, 96]
    step = 0; j = 3
    while j <= 31 or jobsC or jobsD:
        ls = []; em = []
        if j <= 31:
            d = ra[step % 2]; ls.append(cmul_ops(d, ya, 68)); ya = d; em.append((21 + j, d))
            if j + 1 <= 31:
                d = rb_[step % 2]; ls.append(cmul_ops(d, yb, 68)); yb = d; em.append((21 + j + 1, d))
            j += 2
        if jobsC:
            d, x, m, row = jobsC.pop(0); ls.append(cmul_ops(d, x, m)); em.append((row, d))
        if step >= 9 and jobsD:
            d, x, m, row = jobsD.pop(0); ls.append(cmul_ops(d, x, m)); em.append((row, d))
        group(ls, pend)
        pend = [emit_ops(row, d) for row, d in em]
        step += 1
        if step == PUB:
            a('''s_cmp_ge_u32 s2, 212
            s_cbranch_scc1 F_nopub
            s_waitcnt vmcnt(0)
            s_cmp_ge_u32 s2, 128
            s_cbranch_scc1 F_pub
            s_barrier
            F_pub:
            s_cmp_lg_u32 s4, 7
            s_cbranch_scc1 F_nopub''')
            nonce_get('F_n0')
            a('''s_mov_b64 exec, 1
            global_store_dword v150, v151, s[8:9] sc1
            s_mov_b64 exec, -1
            F_nopub:''')
            st(2)
    group([], pend)
    for c, (row, t) in held.items(): a(f'ds_write_b32 v{160+c}, v{t} offset:{row*PITCH}')
    a(f'''v_lshrrev_b32 v4, 2, v0
    v_and_b32 v5, 1, v0
    v_lshl_add_u32 v4, v4, 1, v5
    v_lshlrev_b32 v5, 5, v4
    v_add_u32 v5, {ST}, v5
    v_and_b32 v49, 2, v0
    s_lshl_b32 s10, s2, 4
    s_add_u32 s10, s10, {MODG}
    v_lshl_add_u32 v8, v49, 2, s10
    s_bfe_u32 s47, s4, 0x10001
    s_lshl_b32 s11, s47, 3
    s_add_u32 s11, s11, s10
    s_add_u32 s11, s11, {896*8}
    v_mov_b32 v9, s11
    s_lshl_b32 s5, s2, 13
    v_lshl_add_u32 v29, v0, 4, s5''')
    st(3)
    a(f'''s_cmp_lg_u32 s4, 0
    s_cbranch_scc1 F_poll_done
    s_waitcnt vmcnt(0)''')
    nonce_get('F_n1')
    a(f'''v_lshlrev_b32 v20, 6, v3
    v_add_u32 v20, {STG}, v20
    v_add_u32 v21, 4096, v20
    v_min_u32 v22, 5, v3
    v_lshrrev_b32 v23, 1, v22
    v_mul_u32_u24 v23, 28, v23
    v_and_b32 v22, 1, v22
    s_lshr_b32 s10, s2, 4
    s_lshl_b32 s10, s10, 1
    s_add_u32 s10, s10, {128 + STG // 64}
    v_add3_u32 v22, v22, v23, s10
    v_lshlrev_b32 v22, 6, v22
    s_mov_b32 s62, 0
    F_poll:
    global_load_dword v24, v20, s[8:9] sc1
    global_load_dword v25, v21, s[8:9] sc1
    global_load_dword v26, v22, s[8:9] sc1
    s_add_u32 s62, s62, 1
    s_waitcnt vmcnt(0)
    v_cmp_ne_u32 s[48:49], s33, v24
    v_cmp_ne_u32 s[50:51], s33, v25
    v_cmp_ne_u32 vcc, s33, v26
    s_or_b64 s[48:49], s[48:49], s[50:51]
    s_or_b64 vcc, vcc, s[48:49]
    s_cbranch_scc0 F_poll_done
    s_cmp_lt_u32 s62, 0x100000
    s_cbranch_scc1 F_poll
    F_poll_done:
    s_waitcnt lgkmcnt(0)''')
    st(4)
    a(f'''s_barrier
    global_load_dwordx4 v[16:19], v29, s[8:9]
    global_load_dwordx4 v[192:195], v5, s[8:9]
    global_load_dwordx4 v[196:199], v5, s[8:9] offset:16
    global_load_dwordx2 v[208:209], v8, s[8:9]
    global_load_dwordx2 v[210:211], v8, s[8:9] offset:{448*8}
    global_load_dwordx2 v[212:213], v9, s[8:9]''')
    hp = f'''v_lshlrev_b32 v51, 4, v4
    v_mul_u32_u24 v52, {U_SZ // 2}, v49
    v_add_u32 v52, v52, v51
    v_lshl_add_u32 v53, v49, 11, v51
    v_add_u32 v52, {U0 + 480}, v52
    v_add_u32 v53, {X0}, v53'''.split('\n')
    def kmf(s):
        a.wait(ds=f'kb{s}')
        a(f'v_mfma_f32_16x16x32_bf16 v[12:15], v[{64+8*s}:{67+8*s}], v[{68+8*s}:{71+8*s}], ' + ('0' if s == 0 else 'v[12:15]'))
    for s in range(16):
        a.ds(f'ds_read_b128 v[{64+8*s}:{67+8*s}], v{216+s%4} offset:{256*(s//4)}', f'ka{s}')
        a.ds(f'ds_read_b128 v[{68+8*s}:{71+8*s}], v{220+s%4} offset:{256*(s//4)}', f'kb{s}')
        for _ in range(2):
            if hp: a(hp.pop(0))
        if s >= 6: kmf(s - 6)
    while hp: a(hp.pop(0))
    for s in range(10, 16): kmf(s)
    a('v_cvt_pk_bf16_f32 v12, v12, v13\nv_cvt_pk_bf16_f32 v14, v14, v15')
    a('ds_write_b16 v40, v12\nds_write_b16_d16_hi v41, v12\nds_write_b16 v42, v14\nds_write_b16_d16_hi v43, v14')
    a('s_waitcnt vmcnt(0)')
    st(5)
    a(f'''s_cmp_lt_u32 s4, 4
    s_cbranch_scc1 F_norl
    s_load_dwordx4 s[12:15], s[0:1], {KA['w1']}
    s_and_b32 s6, s4, 3
    v_bfe_u32 v1, v0, 3, 3              ; row 0..7
    v_and_b32 v2, 7, v0                 ; granule
    s_lshl_b32 s7, s6, 4
    v_add_u32 v1, s7, v1
    v_lshlrev_b32 v2, 4, v2
    s_movk_i32 s16, 3584
    s_movk_i32 s17, 896
    v_mad_u32_u24 v10, v1, s16, v2      ; w1 offset
    v_mad_u32_u24 v11, v1, s17, v2      ; w2 offset
    s_mul_hi_u32 s18, s2, 0x24924925    ; hi = q/7
    s_mul_i32 s19, s18, 7
    s_sub_u32 s19, s2, s19              ; lo
    s_mov_b32 s26, {448*3584}
    s_mov_b32 s27, 0x20000
    s_mov_b32 s54, {448*3584}
    s_mov_b32 s55, 0x20000
    s_cmp_ge_u32 s2, 168
    s_cselect_b32 s54, 0, s54
    s_waitcnt lgkmcnt(0)
    s_mov_b32 s52, s14
    s_mov_b32 s53, s15
    s_cmp_ge_u32 s2, 196
    s_cbranch_scc1 F_rlA2
    s_mov_b32 s24, s12
    s_mov_b32 s25, s13
    s_mul_i32 s20, s19, {64*3584}
    s_lshl_b32 s21, s18, 7
    s_add_u32 s20, s20, s21
    s_add_u32 s21, s20, {8*3584}
    buffer_load_dwordx4 v[224:227], v10, s[24:27], s20 offen
    buffer_load_dwordx4 v[228:231], v10, s[24:27], s21 offen
    s_mul_i32 s56, s18, 28
    s_lshl_b32 s21, s19, 2
    s_add_u32 s56, s56, s21
    s_lshl_b32 s56, s56, 11
    s_add_u32 s56, s56, {W1F}
    s_mov_b32 s58, 3
    s_movk_i32 s59, 512
    s_branch F_rlB
    F_rlA2:
    s_mov_b32 s24, s14
    s_mov_b32 s25, s15
    s_sub_u32 s22, s18, 28
    s_mul_i32 s20, s22, {64*896}
    s_lshl_b32 s21, s19, 7
    s_add_u32 s20, s20, s21
    s_add_u32 s21, s20, {8*896}
    buffer_load_dwordx4 v[224:227], v11, s[24:27], s20 offen
    buffer_load_dwordx4 v[228:231], v11, s[24:27], s21 offen
    s_lshl_b32 s56, s19, 2
    s_and_b32 s21, s22, 3
    s_add_u32 s56, s56, s21
    s_mul_i32 s56, s56, 28
    s_and_b32 s21, s22, -4
    s_add_u32 s56, s56, s21
    s_lshl_b32 s56, s56, 11
    s_add_u32 s56, s56, {W2F}
    s_mov_b32 s58, 2
    s_movk_i32 s59, 1024
    F_rlB:
    s_add_u32 s22, s18, 4
    s_mul_i32 s20, s22, {64*896}
    s_lshl_b32 s21, s19, 7
    s_add_u32 s20, s20, s21
    s_add_u32 s21, s20, {8*896}
    buffer_load_dwordx4 v[232:235], v11, s[52:55], s20 offen
    buffer_load_dwordx4 v[236:239], v11, s[52:55], s21 offen
    s_lshl_b32 s57, s19, 2
    s_and_b32 s21, s22, 3
    s_add_u32 s57, s57, s21
    s_mul_i32 s57, s57, 28
    s_and_b32 s21, s22, -4
    s_add_u32 s57, s57, s21
    s_lshl_b32 s57, s57, 11
    s_add_u32 s57, s57, {W2F}
    F_norl:''')
    a('''v_add_f32 v48, v210, v211
    v_add_f32 v208, v208, v209
    v_add_f32 v212, v212, v213
    v_cvt_pk_bf16_f32 v48, 0, v48
    v_cvt_pk_bf16_f32 v208, 0, v208
    v_cvt_pk_bf16_f32 v212, 0, v212
    v_add_f32 v48, 1.0, v48''')
    for i in range(8): a(f'v_and_b32 v{54+i}, 0xffff0000, v{192+i}')
    a('v_readfirstlane_b32 s36, v212\nv_cvt_pk_bf16_f32 v48, 0, v48')
    for i in range(8): a(f'v_rcp_f32 v{54+i}, v{54+i}')
    for i in range(8): a(f'v_lshlrev_b32 v{20+i}, 16, v{192+i}')
    for i in range(4):
        a(f'v_lshlrev_b32 v{64+2*i}, 16, v{16+i}')
        a(f'v_and_b32 v{65+2*i}, 0xffff0000, v{16+i}')
    a('ds_write_b128 v53, v[16:19]')
    for i in range(8): a(f'v_sub_f32 v{20+i}, v{64+i}, v{20+i}')
    for i in range(8): a(f'v_mul_f32 v{20+i}, v{20+i}, v{54+i}')
    for i in range(8): a(f'v_fma_f32 v{20+i}, v{20+i}, v48, v208')
    for i in range(4): a(f'v_cvt_pk_bf16_f32 v{54+i}, v{20+2*i}, v{21+2*i}')
    a('ds_write_b128 v52, v[54:57]\ns_waitcnt lgkmcnt(0)\ns_barrier')
    a.reset_counters()
    F = lambda b, m: 64 + 64 * b + 4 * m
    A = lambda b, n: 96 + 64 * b + 4 * n
    ACC = lambda c: 192 + 4 * c
    for e in range(9): a.ds(f'ds_read_u16 v{128+e}, v{30+e}', 'e')
    a(f'''s_mul_i32 s42, s38, {KR_SZ}
    s_add_u32 s42, s42, {KR0}
    v_lshl_add_u32 v28, v6, 4, s42
    s_and_b32 s48, s4, 1                  ; half
    v_and_b32 v30, 15, v0                 ; i / j
    v_bfe_u32 v31, v0, 4, 2               ; kg
    s_mul_i32 s49, s47, {U_SZ}
    s_lshl_b32 s50, s48, 8
    s_add_u32 s49, s49, s50
    s_add_u32 s49, s49, {U0}
    v_lshlrev_b32 v32, 5, v30
    v_lshl_add_u32 v32, v31, 4, v32
    v_add_u32 v32, s49, v32               ; F addr
    v_lshlrev_b32 v33, 3, v31
    v_sub_u32 v33, v33, v30
    v_add_u32 v33, 1807, v33
    v_and_b32 v34, 1, v33                 ; 1 -> copy B
    v_and_b32 v33, -2, v33
    v_lshlrev_b32 v33, 1, v33
    v_mul_u32_u24 v34, {KR_B}, v34
    s_mul_i32 s49, s47, {KR_SZ}
    s_add_u32 s49, s49, s50
    s_add_u32 s49, s49, {KR0 - 512}
    v_mov_b32 v148, 0
    v_mov_b32 v149, 0''')
    a.wait(ds='e')
    for q in range(4): a(f'v_lshl_or_b32 v{140+q}, v{129+2*q}, 16, v{128+2*q}')
    a.ds('ds_write_b128 v28, v[140:143]')
    for q in range(4): a(f'v_lshl_or_b32 v{144+q}, v{130+2*q}, 16, v{129+2*q}')
    a.ds(f'ds_write_b128 v28, v[144:147] offset:{KR_B}')
    a(f'''v_cmp_gt_u32 vcc, 4, v6
    s_and_saveexec_b64 s[40:41], vcc
    v_lshl_add_u32 v28, v6, 3, s42
    ds_write_b64 v28, v[148:149] offset:4096
    ds_write_b64 v28, v[148:149] offset:{4096 + KR_B}
    s_mov_b64 exec, s[40:41]
    v_add3_u32 v33, v33, v34, s49
    v_subrev_u32 v34, 1024, v33
    v_subrev_u32 v35, 2048, v33
    v_subrev_u32 v36, 3072, v33
    s_waitcnt lgkmcnt(0)''')
    a.reset_counters()
    a('s_cmp_ge_u32 s4, 4\ns_cbranch_scc1 F_helper')
    for q in range(8): a.ds(f'ds_read_b128 v[{F(0,q)}:{F(0,q)+3}], v32 offset:{512*q}', f'F0_{q}')
    a('s_barrier')
    st(6)
    def reads(s):
        b = s & 1; L = []
        for q in range(8):
            if s: L.append((f'ds_read_b128 v[{F(b,q)}:{F(b,q)+3}], v32 offset:{64*s + 512*q}', f'F{s}_{q}'))
            o = (64 * s + (512 if q % 2 == 0 else 0)) // 4
            L.append((f'ds_read2_b32 v[{A(b,q)}:{A(b,q)+1}], v{33 + q//2} offset0:{o} offset1:{o+1}', f'A{s}_{q}'))
            L.append((f'ds_read2_b32 v[{A(b,q)+2}:{A(b,q)+3}], v{33 + q//2} offset0:{o+2} offset1:{o+3}', f'A{s}_{q}'))
        return L
    tail = f'''v_and_b32 v37, 63, v0
    v_lshlrev_b32 v37, 4, v37
    s_lshl_b32 s49, s4, 12
    v_add_u32 v38, s49, v37
    s_xor_b32 s49, s49, 4096
    v_add_u32 v37, s49, v37
    v_lshlrev_b32 v39, 5, v30
    v_lshl_add_u32 v39, v31, 3, v39
    s_lshl_b32 s50, s48, 11
    v_add_u32 v39, s50, v39
    s_mul_i32 s51, s47, {U_SZ}
    s_add_u32 s51, s51, {U0 + 480}
    v_add_u32 v40, s51, v39
    s_lshl_b32 s51, s47, 12
    s_add_u32 s52, s51, {X0}
    v_add_u32 v41, s52, v39
    s_lshl_b32 s52, s2, 13
    s_add_u32 s51, s51, s52
    s_add_u32 s51, s51, {X2T}
    v_add_u32 v42, s51, v39
    s_cmp_eq_u32 s47, 0
    s_cselect_b32 s46, 16, 0
    s_lshl_b32 s29, s29, s46
    s_and_b32 s29, s29, 0xffff0000'''.split('\n')
    tail2 = []
    for q in range(4):
        tail2.append(('ds', f'ds_read_b64 v[{44+2*q}:{45+2*q}], v40 offset:{512*q}', 'hx'))
        tail2.append(('ds', f'ds_read_b64 v[{52+2*q}:{53+2*q}], v41 offset:{512*q}', 'hx'))
    tail3 = []
    for k in range(8):
        tail3 += [f'v_lshlrev_b32 v{64+2*k}, 16, v{44+k}', f'v_and_b32 v{65+2*k}, 0xffff0000, v{44+k}',
                  f'v_lshlrev_b32 v{80+2*k}, 16, v{52+k}', f'v_and_b32 v{81+2*k}, 0xffff0000, v{52+k}']
    r0 = reads(0)
    for s in range(4):
        b = s & 1
        nxt = reads(s + 1) if s < 3 else []
        if s == 0: pairs = [(n, m) for n in range(8) for m in range(8 - n)]
        else: pairs = sorted([(n, m) for n in range(8) for m in range(8 - n)], key=lambda p: (max(p), p))
        seen = set()
        if s == 0:
            for _ in range(6): t, g = r0.pop(0); a.ds(t, g)
        for k, (n, m) in enumerate(pairs):
            a.wait(ds=[f'A{s}_{n}', f'F{s}_{m}'])
            c = n + m
            first = (s == 0 and c not in seen); seen.add(c)
            a(f'v_mfma_f32_16x16x32_bf16 v[{ACC(c)}:{ACC(c)+3}], v[{A(b,n)}:{A(b,n)+3}], v[{F(b,m)}:{F(b,m)+3}], ' + ('0' if first else f'v[{ACC(c)}:{ACC(c)+3}]'))
            if s == 0 and r0:
                t, g = r0.pop(0); a.ds(t, g)
            elif (k >= 6 or s == 0) and nxt:
                t, g = nxt.pop(0); a.ds(t, g)
            if s == 2 and k >= 30:
                for _ in range(4):
                    if tail: a(tail.pop(0))
            if s == 3:
                if tail2:
                    _, t, g = tail2.pop(0); a.ds(t, g)
                elif k >= 14 and tail3:
                    a.wait(ds='hx')
                    a(tail3.pop(0))
                    if tail3: a(tail3.pop(0))
        assert not nxt
    assert not tail and not tail2 and not tail3
    a('s_cmp_eq_u32 s48, 0\ns_cbranch_scc1 F_h0\ns_nop 4')
    for q in range(4): a(f'ds_write_b128 v38, v[{ACC(q)}:{ACC(q)+3}] offset:{1024*q}')
    for q in range(16): a(f'v_fma_f32 v{64+q}, s29, v{64+q}, v{ACC(4)+q}')
    a('s_branch F_h1\nF_h0:\ns_nop 4')
    for q in range(4): a(f'ds_write_b128 v38, v[{ACC(4+q)}:{ACC(4+q)+3}] offset:{1024*q}')
    for q in range(16): a(f'v_fma_f32 v{64+q}, s29, v{64+q}, v{ACC(0)+q}')
    a.label('F_h1')
    a('s_waitcnt lgkmcnt(0)\ns_barrier')
    a.reset_counters()
    for q in range(4): a.ds(f'ds_read_b128 v[{96+4*q}:{99+4*q}], v37 offset:{1024*q}', f'p{q}')
    for q in range(4):
        a.wait(ds=f'p{q}')
        for r in range(4): a(f'v_add_f32 v{64+4*q+r}, v{64+4*q+r}, v{96+4*q+r}')
        for r in range(4): a(f'v_fmac_f32 v{80+4*q+r}, s36, v{64+4*q+r}')
        a(f'v_cvt_pk_bf16_f32 v{112+2*q}, v{80+4*q}, v{81+4*q}\nv_cvt_pk_bf16_f32 v{113+2*q}, v{82+4*q}, v{83+4*q}')
        a(f'global_store_dwordx2 v42, v[{112+2*q}:{113+2*q}], s[8:9] offset:{512*q}' + (' sc1' if 'xsc1' in OPT else (' nt' if 'xnt' in OPT else '')))
    st(7)
    if ts: stamp_store_w(a, 0, 8, 'F_ts0', 's4', 8)
    a('s_endpgm')
    a.label('F_helper')
    a(f'''s_barrier
    s_lshl_b32 s7, s4, 12
    s_add_u32 s7, s7, 16384
    v_and_b32 v3, 63, v0
    v_lshlrev_b32 v3, 4, v3
    v_bfe_u32 v5, v0, 4, 1
    v_lshlrev_b32 v5, 6, v5
    v_xor_b32 v4, v3, v5
    v_add_u32 v4, s7, v4
    v_bfe_u32 v6, v0, 5, 1              ; h
    v_bfe_u32 v9, v0, 4, 1
    v_bfe_u32 v8, v0, 2, 2              ; r4
    v_lshlrev_b32 v8, 7, v8
    v_lshl_add_u32 v8, v9, 5, v8
    v_and_b32 v9, 3, v0
    v_lshl_add_u32 v8, v9, 3, v8
    v_bfe_u32 v9, v0, 3, 1
    v_lshlrev_b32 v9, 6, v9
    v_xor_b32 v8, v8, v9
    v_add_u32 v8, s7, v8
    s_add_u32 s58, s58, 7
    v_lshlrev_b32 v7, s58, v6
    v_add_u32 v10, v7, v8               ; A first
    v_add_u32 v11, s59, v10
    v_xor_b32 v12, 64, v10
    v_xor_b32 v13, 64, v11
    v_lshl_add_u32 v14, v6, 9, v8
    v_xor_b32 v15, 64, v14
    s_lshl_b32 s6, s6, 11
    s_add_u32 s56, s56, s6
    s_add_u32 s57, s57, s6
    v_add_u32 v16, s56, v3
    v_add_u32 v17, s57, v3
    s_waitcnt vmcnt(2)
    ds_write_b128 v4, v[224:227]
    ds_write_b128 v4, v[228:231] offset:1024
    s_waitcnt vmcnt(0)
    ds_write_b128 v4, v[232:235] offset:2048
    ds_write_b128 v4, v[236:239] offset:3072
    s_waitcnt lgkmcnt(2)
    ds_read_b64_tr_b16 v[20:21], v10
    ds_read_b64_tr_b16 v[22:23], v11
    ds_read_b64_tr_b16 v[24:25], v12
    ds_read_b64_tr_b16 v[26:27], v13
    s_waitcnt lgkmcnt(4)
    ds_read_b64_tr_b16 v[28:29], v14 offset:2048
    ds_read_b64_tr_b16 v[30:31], v14 offset:3072
    ds_read_b64_tr_b16 v[32:33], v15 offset:2048
    ds_read_b64_tr_b16 v[34:35], v15 offset:3072
    s_waitcnt lgkmcnt(4)
    {'s_branch F_h_done' if 'norst' in OPT else ''}
    global_store_dwordx4 v16, v[20:23], s[8:9]{RST}
    global_store_dwordx4 v16, v[24:27], s[8:9] offset:1024{RST}
    s_cmp_ge_u32 s2, 168
    s_cbranch_scc1 F_h_done
    s_waitcnt lgkmcnt(0)
    global_store_dwordx4 v17, v[28:31], s[8:9]{RST}
    global_store_dwordx4 v17, v[32:35], s[8:9] offset:1024{RST}
    F_h_done:''')
    if ts: stamp_store_w(a, 0, 6, 'F_ts2', 's4', 8)
    a.label('F_end')
    a('s_endpgm')
    a.label('F_relay'); a.reset_counters()
    a(f'''s_load_dwordx4 s[64:67], s[0:1], {KA['c']}
    s_sub_u32 s34, s2, 224
    s_lshl_b32 s34, s34, 1
    s_lshr_b32 s5, s4, 2
    s_add_u32 s34, s34, s5                ; idx 0..63
    s_and_b32 s6, s4, 3
    v_and_b32 v155, 3, v0
    v_bfe_u32 v153, v0, 2, 6
    v_mul_u32_u24 v154, 5376, v153
    v_lshl_add_u32 v154, v155, 4, v154
    v_lshlrev_b32 v153, 1, v153
    s_lshl_b32 s7, s34, 6
    s_add_u32 s7, s7, {42*64}
    s_mov_b32 s74, {448*5376}
    s_mov_b32 s75, 0x20000
    s_cmp_ge_u32 s34, 42
    s_cselect_b32 s74, 0, s74
    s_waitcnt lgkmcnt(0)
    s_mov_b32 s8, s78
    s_mov_b32 s9, s79
    s_mov_b32 s72, s66
    s_mov_b32 s73, s67''')
    for i in range(7): a(f'global_load_ushort v{120+i}, v153, s[64:65] offset:{128*i}')
    for i in range(7):
        a(f'buffer_load_dwordx4 v[{92+4*i}:{95+4*i}], v154, s[72:75], s7 offen')
        if i < 6: a(f's_add_u32 s7, s7, {64*5376}')
    a(f'''v_mov_b32 v20, 0
    v_mov_b32 v21, 0
    v_mov_b32 v22, 0
    v_mov_b32 v23, 0
    v_lshlrev_b32 v5, 4, v0
    v_add_u32 v5, {FLAGS}, v5
    global_store_dwordx4 v5, v[20:23], s[8:9]''')
    mod_reduce(7, 120, 128, 92, ['s_waitcnt vmcnt(8)'] + [f's_waitcnt vmcnt({7-i})' for i in range(7)], f'''s_lshl_b32 s10, s4, 7
        v_lshl_add_u32 v156, v155, 5, s10
        v_bfe_u32 v157, v0, 4, 1
        v_lshl_add_u32 v156, v157, 3, v156
        v_bfe_u32 v157, v0, 5, 1
        v_lshl_add_u32 v156, v157, 2, v156''')
    a(f'''s_waitcnt lgkmcnt(0)
    s_barrier
    s_cmp_lg_u32 s6, 0
    s_cbranch_scc1 F_rl_done
    s_cmp_ge_u32 s34, 42
    s_cbranch_scc1 F_rl_done
    s_mov_b32 exec_hi, 0
    v_and_b32 v155, 31, v0
    v_lshlrev_b32 v156, 2, v155
    s_lshl_b32 s10, s5, 9
    v_add_u32 v157, s10, v156
    ds_read2_b32 v[112:113], v157 offset0:0 offset1:32
    ds_read2_b32 v[114:115], v157 offset0:64 offset1:96
    s_lshl_b32 s11, s34, 7
    s_add_u32 s11, s11, {MOD + 42*128}
    v_add_u32 v158, s11, v156
    s_waitcnt lgkmcnt(0)
    v_add_f32 v112, v112, v113
    v_add_f32 v114, v114, v115
    v_add_f32 v112, v112, v114
    v_cvt_pk_bf16_f32 v120, 0, v112
    global_store_dword v158, v120, s[8:9]
    s_cmp_ge_u32 s34, 28
    s_cbranch_scc1 F_rl_done
    s_lshl_b32 s11, s34, 3
    s_add_u32 s11, s11, {CS + 4}
    s_cmp_ge_u32 s34, 14
    s_cbranch_scc0 F_mod_cs
    s_sub_u32 s11, s11, 116
    v_add_f32 v120, 1.0, v120
    v_cvt_pk_bf16_f32 v120, 0, v120
    F_mod_cs:
    v_mul_f32 v120, {LOG2E}, v120
    v_mul_u32_u24 v158, 112, v155
    v_add_u32 v158, s11, v158
    global_store_dword v158, v120, s[8:9]
    F_rl_done:''')
    if ts:
        st(1); stamp_store_w(a, 0, 2, 'F_ts1', 's4', 8)
    a('s_endpgm')
    return a.text(), kernel_desc('front_kernel', 240, 102 if ts else 84, 240)
```

```python
from asmlib import *
from layout import *
from k_prep import stamp_store, stamp_store_w
import struct
f2u = lambda f: struct.unpack('<I', struct.pack('<f', f))[0]

GRID = 224
H2 = 0
X2S = 57344
STATP = 65536
RS = 67584
LDS = 69632
def optint(name, dflt):
    for o in OPT:
        if o.startswith(name + '='): return int(o.split('=')[1])
    return dflt
PUB0 = optint('pub0', 40); POLL0 = optint('poll0', 140); EPR = (optint('epr0', 3), optint('epr1', 3))

def gen_mlp(ts=False):
    a = Asm()
    a.raw(kernel_header('mlp_kernel'))
    st = (lambda i: a(f'{TSOP} s[{80+2*i}:{81+2*i}]')) if ts else (lambda i: None)
    st(0)
    a(f'''s_cmp_ge_u32 s2, {GRID}
    s_cbranch_scc1 M_end
    s_load_dwordx2 s[8:9], s[0:1], {KA['ws']}
    s_load_dwordx2 s[10:11], s[0:1], {KA['out']}
    s_lshr_b32 s3, s2, 3
    s_mul_hi_u32 s4, s3, 0x24924925       ; idx/7
    s_mul_i32 s5, s4, 7
    s_sub_u32 s5, s3, s5                  ; p
    s_and_b32 s3, s2, 7
    s_lshl_b32 s3, s3, 2
    s_add_u32 s4, s4, s3                  ; g
    v_lshrrev_b32 v4, 6, v0
    v_and_b32 v1, 63, v0
    v_readfirstlane_b32 s6, v4            ; wave
    v_lshlrev_b32 v1, 4, v1               ; lane*16
    v_lshrrev_b32 v5, 3, v0               ; dr
    v_and_b32 v6, 7, v0                   ; oct
    v_lshlrev_b32 v7, 12, v5
    v_lshl_add_u32 v7, v6, 4, v7
    v_mul_u32_u24 v8, 112, v5
    v_add_u32 v8, {CS}, v8
    s_lshl_b32 s7, s4, 7                  ; g*128 bytes
    s_add_u32 s7, s7, {X2T}
    s_mov_b32 s14, 0x10000000
    s_mov_b32 s15, 0x20000
    s_lshl_b32 s16, s5, 18                ; p*64*4096
    s_add_u32 s16, s16, s7
    s_lshl_b32 s17, s5, 2
    s_add_u32 s17, s17, s6
    s_mul_i32 s17, s17, {28*2048}
    s_add_u32 s18, s17, {W1F}
    s_add_u32 s19, s17, {W2F}             ; W2 base
    s_waitcnt lgkmcnt(0)
    s_mov_b32 s12, s8
    s_mov_b32 s13, s9''')
    for i in range(14):
        a.vm(f'buffer_load_dwordx4 v[{64+4*i}:{67+4*i}], v7, s[12:15], s7 offen', f'x{i}')
        a(f's_add_u32 s7, s7, {32*4096}')
    for i in range(7):
        a.vm(f'global_load_dwordx4 v[{32+4*i}:{35+4*i}], v8, s[8:9] offset:{16*i}', 'cs')
    a.vm('buffer_load_dwordx4 v[120:123], v7, s[12:15], s16 offen', 'sl')
    a(f's_add_u32 s16, s16, {32*4096}')
    a.vm('buffer_load_dwordx4 v[124:127], v7, s[12:15], s16 offen', 'sl')
    a(f'''s_lshr_b32 s20, s6, 1
    s_lshl_b32 s20, s20, 10
    v_add_u32 v12, s20, v1
    v_xor_b32 v13, 1024, v12
    s_and_b32 s21, s6, 1
    s_lshl_b32 s21, s21, 10
    v_add_u32 v14, s21, v1
    v_xor_b32 v15, 1024, v14''')
    a(f'''s_mul_i32 s22, s4, 28
    s_add_u32 s22, s22, s6
    s_lshl_b32 s22, s22, 13
    s_add_u32 s22, s22, {HF}''')
    for q in range(7):
        a(f'''s_add_u32 s23, s5, {q}
        s_sub_u32 s24, s23, 7
        s_cmp_ge_u32 s23, 7
        s_cselect_b32 s23, s24, s23
        s_lshl_b32 s24, s23, 13
        s_add_u32 s{40+q}, s19, s24
        s_lshl_b32 s24, s23, 15
        s_add_u32 s{50+q}, s22, s24''')
    W1 = lambda ks, ft: f'a[{8*ks+4*ft}:{8*ks+4*ft+3}]'
    def W2(q, k2, dt):
        o = 8 * k2 + 4 * dt
        if q == 0: return f'a[{224+o}:{227+o}]'
        if q <= 4: return f'v[{128+32*(q-1)+o}:{131+32*(q-1)+o}]'
        return f'a[{32*(q-5)+o}:{32*(q-5)+o+3}]'
    def HB(q, k2, tt):
        o = 8 * k2 + 4 * tt
        if q == 0: return f'v[{32+o}:{35+o}]'
        if q <= 5: return f'a[{64+32*(q-1)+o}:{67+32*(q-1)+o}]'
        return f'v[{32+o}:{35+o}]'
    bgq = []
    for ks in range(28):
        for ft in range(2):
            j = 2 * ks + ft
            pre = f's_add_u32 s18, s18, 4096' if (j % 4 == 0 and j > 0) else None
            bgq.append((pre, f'buffer_load_dwordx4 {W1(ks,ft)}, v1, s[12:15], s18 offen offset:{(j%4)*1024}', f'w1_{ks}', 0))
    for q in range(7):
        for k2 in range(4):
            for dt in range(2):
                pre = f's_add_u32 s{40+q}, s{40+q}, 4096' if (k2 == 2 and dt == 0) else None
                gate = 0 if q == 0 else (1 if q <= 4 else 2)
                bgq.append((pre, f'buffer_load_dwordx4 {W2(q,k2,dt)}, v{12+dt}, s[12:15], s{40+q} offen offset:{(k2%2)*2048}', f'w2_{q}', gate))
    gate_lvl = [0]
    def bg(n=1):
        for _ in range(n):
            if bgq and bgq[0][3] <= gate_lvl[0]:
                pre, t, tag, _g = bgq.pop(0)
                if pre: a(pre)
                a.vm(t, tag)
    bg(8)
    a(f'''v_lshlrev_b32 v9, 4, v0
    v_bfe_u32 v10, v0, 4, 1
    v_lshlrev_b32 v10, 6, v10
    v_xor_b32 v9, v9, v10
    v_bfe_u32 v10, v0, 5, 1               ; h
    v_bfe_u32 v11, v0, 2, 2               ; r4
    v_lshl_add_u32 v2, v10, 3, v11
    v_lshlrev_b32 v2, 7, v2
    v_bfe_u32 v60, v0, 4, 1
    v_lshl_add_u32 v2, v60, 5, v2
    v_and_b32 v60, 3, v0
    v_lshl_add_u32 v2, v60, 3, v2
    v_bfe_u32 v60, v0, 3, 1
    v_lshlrev_b32 v60, 6, v60
    v_xor_b32 v2, v2, v60
    s_lshr_b32 s21, s21, 4                ; (w&1)*64
    v_xor_b32 v2, s21, v2
    v_xor_b32 v3, 64, v2                  ; TR1''')
    for i in range(16): a(f'v_mov_b32 v{16+i}, 0')
    U = lambda i, j: 128 + 8 * i + 2 * j
    for i in range(14):
        a.wait(vm=f'x{i}')
        if i == 0: st(1)
        for j in range(4):
            a(f'v_lshlrev_b32 v{U(i,j)}, 16, v{64+4*i+j}')
            a(f'v_and_b32 v{U(i,j)+1}, 0xffff0000, v{64+4*i+j}')
        for j in range(4):
            a(f'v_pk_add_f32 v[{16+2*j}:{17+2*j}], v[{16+2*j}:{17+2*j}], v[{U(i,j)}:{U(i,j)+1}]')
            a(f'v_pk_fma_f32 v[{24+2*j}:{25+2*j}], v[{U(i,j)}:{U(i,j)+1}], v[{U(i,j)}:{U(i,j)+1}], v[{24+2*j}:{25+2*j}]')
        bg(1)
    for j in range(8): a(f'v_permlane32_swap_b32 v{16+j}, v{24+j}')
    for j in range(8): a(f'v_add_f32 v{16+j}, v{16+j}, v{24+j}')
    bg(1)
    for i in range(4): a(f'v_permlane16_swap_b32 v{16+2*i}, v{17+2*i}')
    for i in range(4): a(f'v_add_f32 v{16+2*i}, v{16+2*i}, v{17+2*i}')
    a(f'''v_lshlrev_b32 v10, 8, v10
    v_lshl_add_u32 v10, v6, 5, v10
    v_bfe_u32 v11, v0, 4, 1
    v_lshl_add_u32 v10, v11, 2, v10
    s_lshl_b32 s23, s6, 9
    s_add_u32 s24, s23, {STATP}
    v_add_u32 v10, s24, v10''')
    for i in range(4): a(f'v_add_f32_dpp v{16+2*i}, v{16+2*i}, v{16+2*i} row_ror:8 row_mask:0xf bank_mask:0xf')
    a.ds('ds_write2_b32 v10, v16, v18 offset0:0 offset1:2')
    a.ds('ds_write2_b32 v10, v20, v22 offset0:4 offset1:6')
    a.wait(vm='sl')
    a.ds(f'ds_write_b128 v9, v[120:123] offset:{X2S}')
    a.ds(f'ds_write_b128 v9, v[124:127] offset:{X2S + 4096}')
    a(f'v_lshrrev_b32 v11, 2, v1\nv_add_u32 v60, {STATP}, v11')
    bg(2)
    a.wait(ds='all')
    a('s_barrier')
    for w in range(4): a.ds(f'ds_read2st64_b32 v[{16+2*w}:{17+2*w}], v60 offset0:{2*w} offset1:{2*w+1}')
    a(f'''s_add_u32 s24, s23, {RS}
    v_add_u32 v11, s24, v11
    v_lshl_add_u32 v61, v6, 5, s24''')
    bg(2)
    a.wait(ds='all')
    a(f'''v_pk_add_f32 v[16:17], v[16:17], v[18:19]
    v_pk_add_f32 v[20:21], v[20:21], v[22:23]
    v_pk_add_f32 v[16:17], v[16:17], v[20:21]
    v_mul_f32 v16, {f2u(1/448)}, v16
    v_mul_f32 v17, {f2u(1/448)}, v17
    v_fma_f32 v17, -v16, v16, v17
    v_max_f32 v17, 0, v17
    v_cvt_pk_bf16_f32 v17, 0, v17
    v_add_f32 v17, {f2u(1e-5)}, v17
    v_cvt_pk_bf16_f32 v17, 0, v17
    v_sqrt_f32 v17, v17
    v_cvt_pk_bf16_f32 v16, 0, v16
    v_cvt_pk_bf16_f32 v17, 0, v17
    v_rcp_f32 v17, v17
    v_sub_f32 v16, 0, v16
    v_mul_f32 v16, v16, v17''')
    a.ds('ds_write2st64_b32 v11, v17, v16 offset0:0 offset1:1')
    bg(1)
    a.wait(ds='all')
    a.ds('ds_read_b128 v[16:19], v61'); a.ds('ds_read_b128 v[20:23], v61 offset:16')
    a.ds('ds_read_b128 v[24:27], v61 offset:256'); a.ds('ds_read_b128 v[28:31], v61 offset:272')
    bg(2)
    a.wait(vm='cs', ds='all')
    for i in range(14):
        for j in range(4):
            u = U(i, j)
            a(f'v_pk_fma_f32 v[{u}:{u+1}], v[{u}:{u+1}], v[{16+2*j}:{17+2*j}], v[{24+2*j}:{25+2*j}]')
        for j in range(4):
            u = U(i, j)
            a(f'v_pk_fma_f32 v[{u}:{u+1}], v[{u}:{u+1}], v[{32+2*i}:{33+2*i}], v[{32+2*i}:{33+2*i}] op_sel:[0,0,1] op_sel_hi:[1,0,1]')
        for j in range(4):
            u = U(i, j)
            a(f'v_cvt_pk_bf16_f32 v{64+4*i+j}, v{u}, v{u+1}')
        a.ds(f'ds_write_b128 v9, v[{64+4*i}:{67+4*i}] offset:{4096*i}')
        bg(1)
    gate_lvl[0] = 1
    a.wait(ds='all')
    a('s_barrier')
    st(2)
    ACC = lambda tt, ft: 64 + 32 * tt + 16 * ft
    BB = lambda k: 16 + 4 * (k % 4)
    def bread(k):
        tt, ks = k // 28, k % 28
        a.ds(f'ds_read_b64_tr_b16 v[{BB(k)}:{BB(k)+1}], v{2+tt} offset:{2048*ks}', f'b{k}')
        a.ds(f'ds_read_b64_tr_b16 v[{BB(k)+2}:{BB(k)+3}], v{2+tt} offset:{2048*ks+512}', f'b{k}')
    def epi_ops(tt):
        L = []
        for k2 in range(4):
            b = ACC(tt, k2 // 2) + 8 * (k2 % 2)
            T = [4 + e for e in range(8)]
            for e in range(8): L.append(f'v_exp_f32 v{T[e]}, -v{b+e}')
            for e in range(8): L.append(f'v_add_f32 v{T[e]}, 1.0, v{T[e]}')
            for e in range(8): L.append(f'v_rcp_f32 v{T[e]}, v{T[e]}')
            for e in range(8): L.append(f'v_mul_f32 v{T[e]}, v{b+e}, v{T[e]}')
            h = 32 + 8 * k2 + 4 * tt
            for e in range(4): L.append(f'v_cvt_pk_bf16_f32 v{h+e}, v{T[2*e]}, v{T[2*e+1]}')
            L.append(('vm', f'buffer_store_dwordx4 v[{h}:{h+3}], v{14+tt}, s[12:15], s{26 + k2//2} offen offset:{(k2%2)*2048} sc1', f'hst{tt}'))
        return L
    a(f'''s_mov_b32 s25, {0x80000000 | LOG2E}
    s_mov_b32 s26, s50
    s_add_u32 s27, s50, 4096
    s_lshl_b32 s28, s4, 2
    s_add_u32 s28, s28, s6
    s_lshl_b32 s28, s28, 6
    s_add_u32 s28, s28, {FLAGS}
    s_lshl_b32 s29, s5, 2
    s_add_u32 s29, s29, s28''')
    def emit_op(o):
        if isinstance(o, tuple): a.vm(o[1], o[2])
        else: a(o)
    bread(0); bread(1); bread(2)
    epi = []
    for tt in range(2):
        for ks in range(28):
            k = 28 * tt + ks
            a.wait(vm=f'w1_{ks}', ds=f'b{k}')
            for ft in range(2):
                c = '0' if ks == 0 else f'v[{ACC(tt,ft)}:{ACC(tt,ft)+15}]'
                a(f'v_mfma_f32_32x32x16_bf16 v[{ACC(tt,ft)}:{ACC(tt,ft)+15}], {W1(ks,ft)}, v[{BB(k)}:{BB(k)+3}], {c}')
                if ft == 0 and k + 3 < 56: bread(k + 3)
                if ft == 1: bg(1)
                if ks >= 1:
                    for _ in range(EPR[ft]):
                        if epi: emit_op(epi.pop(0))
            if tt == 1 and ks == 8: gate_lvl[0] = 2
        assert not epi
        epi = epi_ops(tt)
        st(3 + tt)
    A2 = lambda dt, tt: 64 + 32 * tt + 16 * dt
    def g2ops(q, tt, first=False):
        L = []
        for k2 in range(4):
            for dt in range(2):
                c = '0' if (first and k2 == 0) else f'v[{A2(dt,tt)}:{A2(dt,tt)+15}]'
                L.append(([f'w2_{q}', f'h{q}_{k2}_{tt}'], f'v_mfma_f32_32x32x16_bf16 v[{A2(dt,tt)}:{A2(dt,tt)+15}], {W2(q,k2,dt)}, {HB(q,k2,tt)}, {c}'))
        return L
    def g2(q, tt, first=False):
        for tags, t in g2ops(q, tt, first):
            a.wait(vm=tags); a(t)
    def publish(tt):
        a.wait(vm=f'hst{tt}')
        a(f'v_mov_b32 v16, s29\nv_mov_b32 v17, 1\ns_mov_b64 exec, 1')
        a.vm(f'global_store_dword v16, v17, s[8:9] offset:{32*tt} sc1', 'flag')
        a('s_mov_b64 exec, -1')
        if 'nohpf' not in OPT:
            a(f'v_and_b32 v18, 0x0f0, v1\nv_and_b32 v19, 0x300, v1\nv_lshlrev_b32 v18, 2, v18\nv_lshl_add_u32 v18, v19, 3, v18\nv_and_b32 v19, 1024, v{14+tt}\nv_add_u32 v18, v18, v19')
            a.vm(f'buffer_load_dword v{20+tt}, v18, s[12:15], s26 offen' + (' sc1' if 'hsc1' in OPT else ''), 'pf')
    def poll_issue(tt):
        a('s_mov_b64 exec, 0x7f')
        a.vm(f'global_load_dword v{22+tt}, v24, s[8:9] offset:{32*tt} sc1', f'poll{tt}')
        a('s_mov_b64 exec, -1')
    def poll_check(tt):
        a.wait(vm=f'poll{tt}')
        a(f'''s_mov_b32 s30, 0
        s_mov_b64 exec, 0x7f
        M_poll{tt}:
        v_cmp_ne_u32 vcc, 1, v{22+tt}
        s_add_u32 s30, s30, 1
        s_nop 3
        s_cbranch_vccz M_poll_done{tt}
        global_load_dword v{22+tt}, v24, s[8:9] offset:{32*tt} sc1
        s_cmp_lt_u32 s30, 0x100000
        s_waitcnt vmcnt(0)
        s_cbranch_scc1 M_poll{tt}
        M_poll_done{tt}:
        s_mov_b64 exec, -1''')
    def hload(q, tt):
        for k2 in range(4):
            so = f's{50+q}' if k2 < 2 else f's{60+q}'
            a.vm(f'buffer_load_dwordx4 {HB(q,k2,tt)}, v{14+tt}, s[12:15], {so} offen offset:{(k2%2)*2048}' + (' sc1' if 'hsc1' in OPT else ''), f'h{q}_{k2}_{tt}')
    bg(100)
    assert not bgq
    for q in range(1, 7): a(f's_add_u32 s{60+q}, s{50+q}, 4096')
    a('v_lshrrev_b32 v24, 2, v1\nv_add_u32 v24, s28, v24')
    own0 = g2ops(0, 0, True)
    n = 0
    while epi:
        emit_op(epi.pop(0)); n += 1
        if n % 16 == 8 and own0:
            tags, t = own0.pop(0); a.wait(vm=tags); a(t)
        if n == PUB0: publish(0)
        if n == POLL0: poll_issue(0)
    for tags, t in own0: a.wait(vm=tags); a(t)
    st(5)
    g2(0, 1, True)
    a('s_barrier')
    publish(1)
    poll_check(0)
    st(6)
    hload(1, 0); hload(2, 0)
    hload(3, 0); hload(4, 0)
    g2(1, 0)
    hload(5, 0)
    a(f'''v_bfe_u32 v8, v0, 5, 1
    v_lshlrev_b32 v8, 4, v8
    s_lshl_b32 s31, s5, 8
    s_lshr_b32 s32, s20, 3
    s_add_u32 s31, s31, s32
    s_add_u32 s31, s31, {MOD + 5*448*4}
    v_add_u32 v8, s31, v8''')
    g2(2, 0)
    hload(6, 0)
    g2(3, 0)
    poll_issue(1)
    g2(4, 0); g2(5, 0)
    poll_check(1)
    hload(1, 1); hload(2, 1)
    g2(6, 0)
    hload(3, 1)
    for i in range(4): a.vm(f'global_load_dwordx4 v[{16+4*i}:{19+4*i}], v8, s[8:9] offset:{32*i}', 'gb')
    hload(4, 1)
    g2(1, 1); hload(5, 1); g2(2, 1); hload(6, 1)
    for q in range(3, 7): g2(q, 1)
    st(7)
    for u in range(1, 4):
        a(f's_xor_b32 s33, s6, {u}\ns_mul_i32 s33, s33, 12288\ns_add_u32 s33, s33, {4096*(u-1)}\nv_add_u32 v{8+u}, s33, v1')
    a(f'''s_mul_i32 s33, s6, 12288
    v_add_u32 v12, s33, v1
    v_bfe_u32 v13, v0, 5, 1
    v_lshlrev_b32 v14, 9, v13
    v_sub_u32 v14, v2, v14
    s_lshl_b32 s34, s20, 2
    s_add_u32 s34, s34, {X2S}
    v_add_u32 v14, s34, v14
    v_and_b32 v15, 31, v0
    v_mul_u32_u24 v15, 896, v15
    v_lshl_add_u32 v15, v13, 4, v15
    s_lshl_b32 s34, s4, 1
    s_and_b32 s35, s6, 1
    s_add_u32 s34, s34, s35
    s_mul_i32 s34, s34, {32*896}
    s_lshl_b32 s35, s5, 7
    s_add_u32 s34, s34, s35
    s_lshr_b32 s35, s20, 4
    s_add_u32 s34, s34, s35
    v_add_u32 v15, s34, v15''')
    for u in range(1, 4):
        for i in range(4):
            a.ds(f'ds_write_b128 v{8+u}, v[{A2(u>>1,u&1)+4*i}:{A2(u>>1,u&1)+3+4*i}] offset:{1024*i}')
    for i in range(4): a.ds(f'ds_read_b64_tr_b16 v[{32+2*i}:{33+2*i}], v14 offset:{1024*i}')
    a.wait(ds='all')
    a('s_barrier')
    for u in range(3):
        for i in range(4):
            a.ds(f'ds_read_b128 v[{80+16*u+4*i}:{83+16*u+4*i}], v12 offset:{4096*u+1024*i}', f'r{u}_{i}')
    for i in range(4):
        a(f'v_lshlrev_b32 v{40+4*i}, 16, v{32+2*i}\nv_and_b32 v{41+4*i}, 0xffff0000, v{32+2*i}')
        a(f'v_lshlrev_b32 v{42+4*i}, 16, v{33+2*i}\nv_and_b32 v{43+4*i}, 0xffff0000, v{33+2*i}')
    for u in range(3):
        for i in range(4):
            a.wait(ds=f'r{u}_{i}')
            for k in range(2):
                r = 64 + 4 * i + 2 * k; s_ = 80 + 16 * u + 4 * i + 2 * k
                a(f'v_pk_add_f32 v[{r}:{r+1}], v[{r}:{r+1}], v[{s_}:{s_+1}]')
    a.wait(vm='gb')
    a(f's_mov_b32 s36, {f2u(0.6931471805599453)}\ns_mov_b32 s37, s36')
    for k in range(8): a(f'v_pk_mul_f32 v[{16+2*k}:{17+2*k}], v[{16+2*k}:{17+2*k}], s[36:37]')
    for k in range(8):
        a(f'v_pk_fma_f32 v[{40+2*k}:{41+2*k}], v[{64+2*k}:{65+2*k}], v[{16+2*k}:{17+2*k}], v[{40+2*k}:{41+2*k}]')
    for k in range(8): a(f'v_cvt_pk_bf16_f32 v{32+k}, v{40+2*k}, v{41+2*k}')
    for pr in range(2):
        a(f'v_permlane32_swap_b32 v{32+4*pr}, v{34+4*pr}\nv_permlane32_swap_b32 v{33+4*pr}, v{35+4*pr}')
    for pr in range(2):
        a(f'global_store_dwordx4 v15, v[{32+4*pr}:{35+4*pr}], s[10:11] offset:{32*pr}')
    if ts: stamp_store_w(a, 1, 8, 'M_ts0', 's6', 4)
    a.label('M_end')
    a('s_endpgm')
    return a.text(), kernel_desc('mlp_kernel', 512, 102 if ts else 72, 256)
```

```python
from asmlib import *
from layout import *

N_MOD, N_ST, N_RL = 84, 128, 196
GRID = N_MOD + N_ST + 2 * N_RL
LDS = 16384

def stamp_store_w(a, launch, nst, lab, wave_sgpr, nw):
    a(f'''s_waitcnt lgkmcnt(0)
    s_mul_i32 s96, s2, {nw}
    s_add_u32 s96, s96, {wave_sgpr}
    s_lshl_b32 s96, s96, 6
    s_add_u32 s96, s96, {TS + launch * 262144}
    s_add_u32 s98, s8, s96
    s_addc_u32 s99, s9, 0
    v_mov_b32 v1, 0
    s_mov_b64 exec, 1''')
    for q in range(nst):
        a(f'v_mov_b32 v2, s{80+2*q}\nv_mov_b32 v3, s{81+2*q}\nglobal_store_dwordx2 v1, v[2:3], s[98:99] offset:{8*q}\ns_nop 1')

def stamp_store(a, launch, nst, lab):
    a(f'''s_waitcnt lgkmcnt(0)
    s_lshl_b32 s96, s2, 6
    s_add_u32 s96, s96, {TS + launch * 65536}
    s_add_u32 s98, s8, s96
    s_addc_u32 s99, s9, 0
    v_mov_b32 v1, 0
    v_cmp_eq_u32 vcc, 0, v0
    s_and_saveexec_b64 s[96:97], vcc
    s_cbranch_execz {lab}''')
    for q in range(nst):
        a(f'v_mov_b32 v2, s{80+2*q}\nv_mov_b32 v3, s{81+2*q}\nglobal_store_dwordx2 v1, v[2:3], s[98:99] offset:{8*q}\ns_nop 1')
    a.label(lab)

def gen_prep(ts=False):
    a = Asm()
    a.raw(kernel_header('prep_kernel'))
    st = (lambda i: a(f'{TSOP} s[{80+2*i}:{81+2*i}]')) if ts else (lambda i: None)
    st(0)
    a(f'''s_load_dwordx2 s[8:9], s[0:1], {KA['ws']}
    s_cmp_lt_u32 s2, {N_MOD}
    s_cbranch_scc1 P_mod
    s_cmp_lt_u32 s2, {N_MOD + N_ST}
    s_cbranch_scc1 P_stats
    s_cmp_lt_u32 s2, {GRID}
    s_cbranch_scc1 P_relay
    s_endpgm''')
    a.label('P_mod'); a.reset_counters()
    a(f'''s_load_dwordx2 s[4:5], s[0:1], {KA['c']}
    s_load_dwordx2 s[12:13], s[0:1], {KA['wmod']}
    v_and_b32 v1, 3, v0
    v_lshrrev_b32 v2, 2, v0
    v_mul_u32_u24 v3, 5376, v2
    v_lshl_add_u32 v3, v1, 4, v3
    s_lshl_b32 s3, s2, 6
    v_lshlrev_b32 v4, 1, v2
    s_mov_b32 s14, {448*5376}
    s_mov_b32 s15, 0x20000
    s_waitcnt lgkmcnt(0)''')
    for i in range(7):
        a.vm(f'global_load_ushort v{10+i}, v4, s[4:5] offset:{128*i}', 'c')
    for i in range(7):
        a.vm(f'buffer_load_dwordx4 v[{20+4*i}:{23+4*i}], v3, s[12:15], s3 offen', f'w{i}')
        if i < 6: a(f's_add_u32 s3, s3, {64*5376}')
    a(f'''s_cmp_lg_u32 s2, 0
    s_cbranch_scc1 P_mod_nz
    v_mov_b32 v60, 0
    v_mov_b32 v61, 0
    v_mov_b32 v62, 0
    v_mov_b32 v63, 0
    v_lshlrev_b32 v5, 4, v0
    v_add_u32 v5, {FLAGS}, v5
    global_store_dwordx4 v5, v[60:63], s[8:9]
    s_waitcnt vmcnt(0)
    P_mod_nz:''')
    for q in range(8): a(f'v_mov_b32 v{50+q}, 0')
    a.wait(vm='c')
    st(1)
    a(f's_mov_b32 s16, {0x80000000 | LOG2E}')
    for i in range(7): a(f'v_lshlrev_b32 v{10+i}, 16, v{10+i}')
    for i in range(7): a(f'v_mul_f32 v{60+i}, s16, v{10+i}')
    for i in range(7): a(f'v_exp_f32 v{60+i}, v{60+i}')
    for i in range(7): a(f'v_add_f32 v{60+i}, 1.0, v{60+i}')
    for i in range(7): a(f'v_rcp_f32 v{60+i}, v{60+i}')
    for i in range(7): a(f'v_mul_f32 v{10+i}, v{10+i}, v{60+i}')
    for i in range(7): a(f'v_cvt_pk_bf16_f32 v{10+i}, v{10+i}, 0')
    for i in range(7): a(f'v_lshlrev_b32 v{60+i}, 16, v{10+i}')
    for i in range(7):
        a.wait(vm=f'w{i}')
        for q in range(4):
            a(f'v_dot2c_f32_bf16 v{50+2*q}, v{20+4*i+q}, v{10+i}')
            a(f'v_dot2c_f32_bf16 v{51+2*q}, v{20+4*i+q}, v{60+i}')
    st(2)
    for i in range(4): a(f'v_permlane32_swap_b32 v{50+2*i}, v{51+2*i}')
    for i in range(4): a(f'v_add_f32 v{50+2*i}, v{50+2*i}, v{51+2*i}')
    a('v_permlane16_swap_b32 v50, v52\nv_permlane16_swap_b32 v54, v56')
    a('v_add_f32 v50, v50, v52\nv_add_f32 v54, v54, v56')
    for sh in (8, 4):
        a(f'v_add_f32_dpp v50, v50, v50 row_ror:{sh} row_mask:0xf bank_mask:0xf')
        a(f'v_add_f32_dpp v54, v54, v54 row_ror:{sh} row_mask:0xf bank_mask:0xf')
    a('''v_lshrrev_b32 v6, 6, v0
    v_lshlrev_b32 v6, 7, v6
    v_lshl_add_u32 v6, v1, 5, v6
    v_bfe_u32 v7, v0, 4, 1
    v_lshl_add_u32 v6, v7, 3, v6
    v_bfe_u32 v7, v0, 5, 1
    v_lshl_add_u32 v6, v7, 2, v6
    ds_write_b32 v6, v50
    ds_write_b32 v6, v54 offset:16
    s_waitcnt lgkmcnt(0)
    s_barrier
    v_cmp_gt_u32 vcc, 32, v0
    s_and_saveexec_b64 s[20:21], vcc
    s_cbranch_execz P_mod_end
    v_lshlrev_b32 v6, 2, v0
    ds_read2_b32 v[10:11], v6 offset0:0 offset1:32
    ds_read2_b32 v[12:13], v6 offset0:64 offset1:96
    s_lshl_b32 s3, s2, 7''')
    a(f'''s_add_u32 s3, s3, {MOD}
    v_add_u32 v6, s3, v6
    s_waitcnt lgkmcnt(0)
    v_add_f32 v10, v10, v11
    v_add_f32 v12, v12, v13
    v_add_f32 v10, v10, v12
    v_cvt_pk_bf16_f32 v10, 0, v10
    global_store_dword v6, v10, s[8:9]
    s_sub_u32 s4, s2, 42
    s_cmp_ge_u32 s4, 28
    s_cbranch_scc1 P_mod_end
    s_cmp_ge_u32 s4, 14
    s_cbranch_scc1 P_mod_cb
    s_lshl_b32 s4, s4, 3
    s_add_u32 s4, s4, {CS + 4}
    s_branch P_mod_cs
    P_mod_cb:
    s_lshl_b32 s4, s4, 3
    s_add_u32 s4, s4, {CS - 112}
    v_add_f32 v10, 1.0, v10
    v_cvt_pk_bf16_f32 v10, 0, v10
    P_mod_cs:
    v_mul_u32_u24 v6, 112, v0
    v_add_u32 v6, s4, v6
    global_store_dword v6, v10, s[8:9]
    P_mod_end:
    s_mov_b64 exec, -1''')
    st(3)
    if ts: stamp_store(a, 0, 4, 'P_ts0')
    a('s_endpgm')
    a.label('P_stats'); a.reset_counters()
    a(f'''s_load_dwordx2 s[12:13], s[0:1], {KA['u']}
    s_sub_u32 s3, s2, {N_MOD}
    v_and_b32 v1, 63, v0
    v_lshrrev_b32 v2, 6, v0
    s_mul_i32 s4, s3, {16*896}
    v_mul_u32_u24 v3, {4*896}, v2
    v_lshl_add_u32 v3, v1, 4, v3
    v_mov_b32 v4, 0x40000000
    v_cmp_gt_u32 vcc, 56, v1
    s_mov_b32 s14, {2048*896}
    s_mov_b32 s15, 0x20000
    v_cndmask_b32 v3, v4, v3, vcc
    s_waitcnt lgkmcnt(0)''')
    for q in range(4):
        a.vm(f'buffer_load_dwordx4 v[{20+4*q}:{23+4*q}], v3, s[12:15], s4 offen offset:{896*q}', f'x{q}')
    if 'nocodepf' not in OPT:
        a('''s_getpc_b64 s[20:21]
        P_pc:
        s_add_u32 s20, s20, conv_kernel - P_pc
        s_addc_u32 s21, s21, 0
        v_lshlrev_b32 v66, 6, v0''')
        a.vm('global_load_dword v64, v66, s[20:21]', 'pf')
        a('v_add_u32 v66, 16384, v66\nv_min_u32 v66, code_end - conv_kernel - 4, v66')
        a.vm('global_load_dword v65, v66, s[20:21]', 'pf')
    a(f'''v_mul_u32_u24 v5, {4*960}, v2
    v_lshl_add_u32 v5, v1, 4, v5
    v_bfe_u32 v6, v0, 2, 2                ; r4
    v_bfe_u32 v7, v0, 5, 1                ; oct
    v_lshl_add_u32 v6, v7, 3, v6
    v_mul_u32_u24 v6, 960, v6
    v_and_b32 v8, 3, v0
    v_lshl_add_u32 v6, v8, 3, v6
    v_bfe_u32 v8, v0, 4, 1                ; dblk
    v_lshl_add_u32 v6, v8, 5, v6
    v_lshl_add_u32 v6, v2, 6, v6
    v_bfe_u32 v9, v0, 1, 3
    v_lshl_add_u32 v9, v8, 3, v9
    v_lshlrev_b32 v9, 13, v9
    v_and_b32 v8, 1, v0
    v_lshl_add_u32 v9, v8, 5, v9
    v_lshl_add_u32 v9, v7, 4, v9
    v_lshl_add_u32 v9, v2, 17, v9         ; + wave*131072
    s_lshl_b32 s5, s3, 6
    v_add_u32 v9, s5, v9
    s_mov_b32 s16, 0x3f803f80
    v_readfirstlane_b32 s6, v2''')
    for q in range(8): a(f'v_mov_b32 v{40+q}, 0')
    a('s_mov_b32 s18, -1\ns_mov_b32 s19, 0x00ffffff')
    for q in range(4):
        a.wait(vm=f'x{q}')
        if q == 0: st(1)
        a(f's_mov_b64 exec, s[18:19]')
        a.ds(f'ds_write_b128 v5, v[{20+4*q}:{23+4*q}] offset:{960*q}')
        a(f's_mov_b64 exec, -1')
        for j in range(4):
            a(f'v_dot2c_f32_bf16 v{40+q}, s16, v{20+4*q+j}')
            a(f'v_dot2c_f32_bf16 v{44+q}, v{20+4*q+j}, v{20+4*q+j}')
    a.wait(ds='all')
    a('s_barrier')
    for r in range(4):
        if r == 3: a('s_cmp_ge_u32 s6, 2\ns_cbranch_scc1 P_st_skip3')
        a(f'ds_read_b64_tr_b16 v[{48+4*r}:{49+4*r}], v6 offset:{256*r}')
        a(f'ds_read_b64_tr_b16 v[{50+4*r}:{51+4*r}], v6 offset:{256*r + 4*960}')
    a.label('P_st_skip3')
    for i in range(4): a(f'v_permlane32_swap_b32 v{40+2*i}, v{41+2*i}')
    for i in range(4): a(f'v_add_f32 v{40+2*i}, v{40+2*i}, v{41+2*i}')
    a('v_permlane16_swap_b32 v40, v42\nv_permlane16_swap_b32 v44, v46')
    a('v_add_f32 v40, v40, v42\nv_add_f32 v44, v44, v46')
    a('s_waitcnt lgkmcnt(0)')
    for r in range(4):
        if r == 3: a('s_cmp_ge_u32 s6, 2\ns_cbranch_scc1 P_st_skip3b')
        a(f'global_store_dwordx4 v9, v[{48+4*r}:{51+4*r}], s[8:9]{PST}')
        if r < 3: a(f'v_add_u32 v9, {4*131072}, v9')
    a.label('P_st_skip3b')
    for sh in (8, 4, 2, 1):
        a(f'v_add_f32_dpp v40, v40, v40 row_ror:{sh} row_mask:0xf bank_mask:0xf')
        a(f'v_add_f32_dpp v44, v44, v44 row_ror:{sh} row_mask:0xf bank_mask:0xf')
    import struct
    inv448 = struct.unpack('<I', struct.pack('<f', 1.0 / 448))[0]
    eps = struct.unpack('<I', struct.pack('<f', 1e-5))[0]
    a(f'''v_mul_f32 v40, {inv448}, v40
    v_mul_f32 v44, {inv448}, v44
    v_fma_f32 v44, -v40, v40, v44
    v_max_f32 v44, 0, v44
    v_cvt_pk_bf16_f32 v44, 0, v44
    v_add_f32 v44, {eps}, v44
    v_cvt_pk_bf16_f32 v44, 0, v44
    v_sqrt_f32 v44, v44
    v_bfe_u32 v10, v0, 4, 1
    v_bfe_u32 v11, v0, 5, 1
    v_lshl_add_u32 v10, v10, 1, v11
    v_lshl_add_u32 v10, v2, 2, v10
    v_cvt_pk_bf16_f32 v44, v40, v44
    s_lshl_b32 s5, s3, 6
    s_add_u32 s5, s5, {ST}
    v_lshl_add_u32 v10, v10, 2, s5
    s_mov_b32 exec_lo, 0x00010001
    s_mov_b32 exec_hi, 0x00010001
    global_store_dword v10, v44, s[8:9]
    s_mov_b64 exec, -1''')
    st(2)
    if ts: stamp_store(a, 0, 3, 'P_ts1')
    a('s_endpgm')
    a.label('P_relay'); a.reset_counters()
    a(f'''s_sub_u32 s3, s2, {N_MOD + N_ST}
    s_cmp_ge_u32 s3, {N_RL}
    s_cbranch_scc1 P_rl_w2
    s_load_dwordx2 s[12:13], s[0:1], {KA['w1']}
    s_mul_hi_u32 s4, s3, 0x24924925
    s_mul_i32 s5, s4, 7
    s_sub_u32 s5, s3, s5
    s_movk_i32 s16, 3584
    s_mul_i32 s17, s5, {64*3584}
    s_lshl_b32 s18, s4, 7
    s_add_u32 s17, s17, s18
    s_mul_i32 s18, s4, 28
    s_lshl_b32 s19, s5, 2
    s_add_u32 s18, s18, s19
    s_lshl_b32 s18, s18, 11
    s_add_u32 s18, s18, {W1F}
    s_mov_b32 s20, 3
    s_movk_i32 s21, 512
    s_branch P_rl_go
    P_rl_w2:
    s_load_dwordx2 s[12:13], s[0:1], {KA['w2']}
    s_sub_u32 s3, s3, {N_RL}
    s_mul_hi_u32 s4, s3, 0x24924925     ; rb
    s_mul_i32 s5, s4, 7
    s_sub_u32 s5, s3, s5                ; pd
    s_movk_i32 s16, 896
    s_mul_i32 s17, s4, {64*896}
    s_lshl_b32 s18, s5, 7
    s_add_u32 s17, s17, s18
    s_and_b32 s19, s4, 3                ; w
    s_lshl_b32 s18, s5, 2
    s_add_u32 s18, s18, s19
    s_mul_i32 s18, s18, 28
    s_and_b32 s19, s4, -4               ; 4*p'
    s_add_u32 s18, s18, s19
    s_lshl_b32 s18, s18, 11
    s_add_u32 s18, s18, {W2F}
    s_mov_b32 s20, 2
    s_movk_i32 s21, 1024
    P_rl_go:
    v_lshrrev_b32 v1, 3, v0             ; row 0..31
    v_and_b32 v2, 7, v0                 ; granule
    v_mul_lo_u32 v3, v1, s16
    v_lshl_add_u32 v3, v2, 4, v3
    s_mov_b32 s14, {448*3584}
    s_mov_b32 s15, 0x20000
    s_lshl_b32 s22, s16, 5
    s_add_u32 s22, s22, s17
    s_waitcnt lgkmcnt(0)''')
    a.vm('buffer_load_dwordx4 v[20:23], v3, s[12:15], s17 offen', 'a')
    a.vm('buffer_load_dwordx4 v[24:27], v3, s[12:15], s22 offen', 'b')
    if 'noparpf' not in OPT:
        a(f'''s_sub_u32 s23, s2, 216
        s_cmp_ge_u32 s23, 224
        s_cbranch_scc1 P_rl_nopf
        s_load_dwordx4 s[24:27], s[0:1], {KA['Are']}
        s_load_dwordx8 s[28:35], s[0:1], {KA['Bre']}
        s_lshl_b32 s23, s23, 10
        v_and_b32 v30, 15, v0
        v_lshl_add_u32 v30, v30, 6, s23
        s_mov_b64 exec, 0xffff
        s_waitcnt lgkmcnt(0)
        global_load_dword v31, v30, s[24:25]
        global_load_dword v32, v30, s[26:27]
        global_load_dword v33, v30, s[28:29]
        global_load_dword v34, v30, s[30:31]
        global_load_dword v35, v30, s[32:33]
        global_load_dword v36, v30, s[34:35]
        s_mov_b64 exec, -1
        s_waitcnt vmcnt(6)
        P_rl_nopf:''')
    a('''v_lshlrev_b32 v4, 4, v0
    v_bfe_u32 v5, v0, 4, 1              ; (row>>1)&1
    v_lshlrev_b32 v5, 6, v5
    v_xor_b32 v4, v4, v5
    v_lshrrev_b32 v6, 6, v0             ; wave
    v_bfe_u32 v7, v0, 5, 1              ; h
    v_lshlrev_b32 v7, s20, v7
    v_lshl_add_u32 v7, v6, 4, v7
    v_bfe_u32 v8, v0, 2, 2              ; r4
    v_add_u32 v7, v7, v8
    v_lshlrev_b32 v7, 7, v7
    v_bfe_u32 v8, v0, 4, 1
    v_lshl_add_u32 v7, v8, 5, v7
    v_and_b32 v8, 3, v0
    v_lshl_add_u32 v7, v8, 3, v7
    v_bfe_u32 v8, v0, 3, 1              ; (r4>>1)&1
    v_lshlrev_b32 v8, 6, v8
    v_xor_b32 v7, v7, v8
    v_add_u32 v8, s21, v7               ; second
    v_xor_b32 v9, 64, v7
    v_xor_b32 v10, 64, v8
    v_and_b32 v11, 63, v0
    v_lshlrev_b32 v11, 4, v11
    v_lshl_add_u32 v11, v6, 11, v11
    v_add_u32 v11, s18, v11''')
    a.wait(vm='a')
    st(1)
    a.ds('ds_write_b128 v4, v[20:23]')
    a.wait(vm='b')
    a.ds('ds_write_b128 v4, v[24:27] offset:4096')
    a.wait(ds='all')
    a(f'''s_barrier
    ds_read_b64_tr_b16 v[20:21], v7
    ds_read_b64_tr_b16 v[22:23], v8
    ds_read_b64_tr_b16 v[24:25], v9
    ds_read_b64_tr_b16 v[26:27], v10
    s_waitcnt lgkmcnt(2)
    global_store_dwordx4 v11, v[20:23], s[8:9]{PST}
    s_waitcnt lgkmcnt(0)
    global_store_dwordx4 v11, v[24:27], s[8:9] offset:1024{PST}''')
    st(2)
    if ts: stamp_store(a, 0, 3, 'P_ts2')
    a('s_endpgm')
    return a.text(), kernel_desc('prep_kernel', 72, 102 if ts else 40, 72)
```

```python
XT   = 0x000000
ST   = 0x200000
MOD  = 0x210000
CS   = 0x218000
FLAGS= 0x220000
STG  = 0x230000
MODG = 0x238000
EPOCH= 0x240000
W1F  = 0x300000
W2F  = 0x500000
X2T  = 0x700000
HF   = 0x900000
TS   = 0x8000000
KA = dict(u=0, Are=8, Aim=16, Bre=24, Bim=32, Cre=40, Cim=48, logdt=56, dskip=64, bx=72, w1=80, w2=88, c=96, wmod=104, out=112, dbg=120, ws=128)
LOG2E = 0x3fb8aa3b
import sys
TSOP = 's_memtime' if '--cyc' in sys.argv else 's_memrealtime'
OPT = set(x[2:] for x in sys.argv if x.startswith('--'))
PST = ' sc1' if 'psc1' in OPT else (' nt' if 'pnt' in OPT else (' sc0 sc1' if 'psc01' in OPT else ''))
```

```python
import sys
from asmlib import *
from layout import *
import k_prep
ts = '--ts' in sys.argv
only = [x for x in sys.argv[1:] if not x.startswith('--')]
out = only[0]
which = only[1] if len(only) > 1 else 'pcm'
hdr = open('adaLN_cond__ssm_conv_s4__dense_activation_silu__prompt.s.ref').read().split('; Override launch')[0]
launch = ''; body = ''; desc = ''
if 'p' in which:
    b, d = k_prep.gen_prep(ts); body += b; desc += d
    launch += f'; @launch kernel=prep_kernel grid=({k_prep.GRID},1,1) block=(256,1,1) lds={k_prep.LDS}\n'
if 'c' in which:
    import k_conv
    b, d = k_conv.gen_conv(ts, '--dbgk' in sys.argv); body += b; desc += d
    launch += f'; @launch kernel=conv_kernel grid=({k_conv.GRID},1,1) block=(512,1,1) lds={k_conv.LDS}\n'
if 'f' in which:
    import k_front
    b, d = k_front.gen_front(ts); body += b; desc += d
    launch += f'; @launch kernel=front_kernel grid=({k_front.GRID},1,1) block=(512,1,1) lds={k_front.LDS}\n'
if 'm' in which:
    import k_mlp
    b, d = k_mlp.gen_mlp(ts); body += b; desc += d
    launch += f'; @launch kernel=mlp_kernel grid=({k_mlp.GRID},1,1) block=(256,1,1) lds={k_mlp.LDS}\n'
s = hdr + launch + '.amdgcn_target "amdgcn-amd-amdhsa--gfx950"\n.text\n' + body + 'code_end:\n.section .rodata,"a"\n' + desc
open(out, 'w').write(s)
```
